```python
import torch

def _softmax(x, axis=-1):
    return torch.softmax(x, dim=axis)
def _gelu(x):
    return torch.nn.functional.gelu(x, approximate="tanh")
def _silu(x):
    return torch.nn.functional.silu(x)
def _sigmoid(x):
    return torch.sigmoid(x)
def _layernorm(x, axis=-1, eps=1e-5):
    m = x.mean(dim=axis, keepdim=True)
    v = x.var(dim=axis, keepdim=True, unbiased=False)
    return (x - m) / torch.sqrt(v + eps)
def _scatter_add(tgt, idx, src, axis=0):
    return tgt.clone().index_add_(axis, idx, src)
def _segment_sum(src, seg, n):
    out = torch.zeros((n,) + src.shape[1:], dtype=src.dtype)
    return out.index_add_(0, seg, src)
def _pad(x, pw):
    flat = tuple(v for pair in reversed(pw) for v in pair)
    return torch.nn.functional.pad(x, flat)

kernel_name = 'sequential_preLN__ssm_conv_s4d__glu_gated_reglu__prompt'

def setup_inputs():

    _w = (lambda a: (lambda t: t.to(torch.bfloat16) if t.is_floating_point() else t)(torch.as_tensor(a)))
    def _A_setup():
        Bsz, L, D, N = 1, 2048, 576, 128
        return {
            "u": _w((lambda *s: torch.randn(*s, dtype=torch.bfloat16) * 0.05)(Bsz, L, D)),
            "log_A_real": _w((lambda *s: torch.randn(*s, dtype=torch.bfloat16) * 6.4)(D, N) * 0.5),
            "A_imag": _w((lambda *s: torch.randn(*s, dtype=torch.bfloat16) * 0.05)(D, N) * 3.14),
            "C_real": _w((lambda *s: torch.randn(*s, dtype=torch.bfloat16) * 0.05)(D, N) / N ** 0.5),
            "C_imag": _w((lambda *s: torch.randn(*s, dtype=torch.bfloat16) * 0.05)(D, N) / N ** 0.5),
            "log_dt": _w((lambda *s: torch.randn(*s, dtype=torch.bfloat16) * 0.05)(D) * 0.5 - 4.0),
            "D_skip": _w((lambda *s: torch.randn(*s, dtype=torch.bfloat16) * 0.05)(D)),
        }
    _A_in = _A_setup()

    def _B_setup():
        B, S, D, F = 1, 2048, 576, 4608
        return {
            "x": _w((lambda *s: torch.randn(*s, dtype=torch.bfloat16) * 0.05)(B, S, D)),
            "W_gate": _w((lambda *s: torch.randn(*s, dtype=torch.bfloat16) * 0.4)(D, F) * (2.0 / D) ** 0.5),
            "W_up": _w((lambda *s: torch.randn(*s, dtype=torch.bfloat16) * 0.4)(D, F) * (2.0 / D) ** 0.5),
            "W_down": _w((lambda *s: torch.randn(*s, dtype=torch.bfloat16) * 0.4)(F, D) * (1.0 / F) ** 0.5),
        }
    _B_in = _B_setup()

    return {
        "A_u": _A_in["u"],
        "A_log_A_real": _A_in["log_A_real"],
        "A_A_imag": _A_in["A_imag"],
        "A_C_real": _A_in["C_real"],
        "A_C_imag": _A_in["C_imag"],
        "A_log_dt": _A_in["log_dt"],
        "A_D_skip": _A_in["D_skip"],
        "B_x": _B_in["x"],
        "B_W_gate": _B_in["W_gate"],
        "B_W_up": _B_in["W_up"],
        "B_W_down": _B_in["W_down"],
    }

def reference(A_u, A_log_A_real, A_A_imag, A_C_real, A_C_imag, A_log_dt, A_D_skip, B_x, B_W_gate, B_W_up, B_W_down):
    def _A_ref(u, log_A_real, A_imag, C_real, C_imag, log_dt, D_skip):
        L = u.shape[1]
        dt = torch.exp(log_dt)
        A = -torch.exp(log_A_real) + 1j * A_imag
        C = (C_real + 1j * C_imag) * dt[:, None]
        pos = (lambda x, dt: x.to(dt))(torch.arange(L), log_dt.dtype)
        P = torch.exp((A * dt[:, None])[:, :, None] * pos[None, None, :])
        K = 2.0 * torch.einsum("dn,dnl->dl", C, P).real
        L2 = 2 * L
        u_t = (lambda x, *d: x.permute(*d))(u, 0, 2, 1)
        Kf = (lambda x, *a, **k: torch.fft.rfft(x.float(), *a, **k))(K, L2)
        Uf = (lambda x, *a, **k: torch.fft.rfft(x.float(), *a, **k))(u_t, L2)
        y = (lambda x, *a, **k: torch.fft.irfft(x, *a, **k).to(torch.bfloat16))(Uf * Kf[None, :, :], L2)[:, :, :L]
        y = (lambda x, *d: x.permute(*d))(y, 0, 2, 1)
        return y + u * D_skip[None, None, :]

    def _B_ref(x, W_gate, W_up, W_down):
        gate = torch.einsum("bsd,df->bsf", x, W_gate)
        up = torch.einsum("bsd,df->bsf", x, W_up)
        gate = gate * (lambda x, dt: x.to(dt))(gate > 0, gate.dtype)
        h = gate * up
        return torch.einsum("bsf,fd->bsd", h, W_down)

    x = A_u
    h = x + _A_ref(_layernorm(x, axis=-1), A_log_A_real, A_A_imag, A_C_real, A_C_imag, A_log_dt, A_D_skip)
    h2 = h + _B_ref(_layernorm(h, axis=-1), B_W_gate, B_W_up, B_W_down)
    return h2
```

```python
class Kern:
    def __init__(self, name, vgpr=256, acc=None, sgpr=102):
        self.name = name; self.L = []; self.vgpr = vgpr; self.acc = acc; self.sgpr = sgpr
        self.uid = 0
    def __call__(self, s):
        for l in s.split("\n"):
            l = l.strip()
            if l: self.L.append("    " + l)
    def label(self, l): self.L.append(f"{self.name}_{l}:")
    def lab(self, l): return f"{self.name}_{l}"
    def newlab(self, p="L"):
        self.uid += 1; return f"{p}{self.uid}"
    def nop(self, n):
        while n > 0:
            k = min(n, 16); self(f"s_nop {k-1}"); n -= k
    def srd(self, d, base_lo, base_hi, size):
        self(f"s_mov_b32 s{d}, s{base_lo}")
        self(f"s_and_b32 s{d+1}, s{base_hi}, 0xffff")
        self(f"s_mov_b32 s{d+2}, {size}")
        self(f"s_mov_b32 s{d+3}, 0x20000")
    def srd_off(self, d, base_lo, base_hi, off, size):
        self(f"s_add_u32 s{d}, s{base_lo}, {off}")
        self(f"s_addc_u32 s{d+1}, s{base_hi}, 0")
        self(f"s_and_b32 s{d+1}, s{d+1}, 0xffff")
        self(f"s_mov_b32 s{d+2}, {size}")
        self(f"s_mov_b32 s{d+3}, 0x20000")
    def text(self):
        acc = self.acc if self.acc is not None else (self.vgpr + 3)//4*4
        t = [".text", f".globl {self.name}", ".p2align 8", f".type {self.name},@function", f"{self.name}:"]
        t += self.L
        t += ["    s_endpgm"]
        return "\n".join(t)
    def desc(self):
        acc = self.acc if self.acc is not None else min(256,(self.vgpr + 3)//4*4)
        return "\n".join([
            f".amdhsa_kernel {self.name}",
            f"  .amdhsa_next_free_vgpr {self.vgpr}",
            f"  .amdhsa_next_free_sgpr {self.sgpr}",
            f"  .amdhsa_accum_offset {acc}",
            "  .amdhsa_group_segment_fixed_size 0",
            "  .amdhsa_kernarg_size 112",
            "  .amdhsa_user_sgpr_count 2",
            "  .amdhsa_user_sgpr_kernarg_segment_ptr 1",
            "  .amdhsa_system_sgpr_workgroup_id_x 1",
            "  .amdhsa_float_denorm_mode_32 3",
            "  .amdhsa_float_denorm_mode_16_64 3",
            ".end_amdhsa_kernel"])

def vr(a, n): return f"v[{a}:{a+n-1}]" if n > 1 else f"v{a}"
def sr(a, n): return f"s[{a}:{a+n-1}]" if n > 1 else f"s{a}"

HEADER = open("sequential_preLN__ssm_conv_s4d__glu_gated_reglu__prompt.s.ref").read().split("; Override launch")[0]

def assemble_file(kernels, launches, path):
    t = HEADER
    for (k, grid, block, lds) in launches:
        t += f"; @launch kernel={k} grid=({grid},1,1) block=({block},1,1) lds={lds}\n"
    t += '.amdgcn_target "amdgcn-amd-amdhsa--gfx950"\n'
    for k in kernels: t += k.text() + "\n"
    t += '.section .rodata,"a"\n'
    for k in kernels: t += ".p2align 6\n" + k.desc() + "\n"
    open(path, "w").write(t)
```

```python
from asmlib import *
WS_UT=0; WS_XT=0x240000; WS_KR0=0x480000; WS_KR1=0x6D0000; WS_HT=0x920000; WS_X2T=0xB60000; WS_H=0xE00000; WS_P=0x2000000
SZ_T=2359296; SZ_KR=576*4160; SZ_H=2048*4608*2; SZ_P=8*SZ_T
K1_LDS=84480

def bf16round(k, dst, src, tmp=None):
    k(f"v_cvt_pk_bf16_f32 v{dst}, v{src}, v{src}")
    k(f"v_lshlrev_b32 v{dst}, 16, v{dst}")

def dpp_reduce16(k, regs):
    for mod in ["quad_perm:[1,0,3,2]", "quad_perm:[2,3,0,1]", "row_half_mirror", "row_mirror"]:
        k.nop(2)
        for r in regs:
            k(f"v_add_f32_dpp v{r}, v{r}, v{r} {mod} row_mask:0xf bank_mask:0xf")

def gen_k1():
    k = Kern("k1_kernel", vgpr=128, sgpr=64)
    k("s_cmp_ge_u32 s2, 256")
    k(f"s_cbranch_scc1 {k.lab('end')}")
    k("s_load_dwordx2 s[4:5], s[0:1], 0")
    k("s_load_dwordx2 s[6:7], s[0:1], 104")
    k("s_cmp_ge_u32 s2, 64")
    k(f"s_cbranch_scc1 {k.lab('kgen')}")
    PITCH=1184; UOFF=32*PITCH
    k("s_waitcnt lgkmcnt(0)")
    k.srd(8, 4, 5, SZ_T)
    k("v_lshrrev_b32 v1, 4, v0")
    k("v_and_b32 v2, 15, v0")
    k("s_lshl_b32 s3, s2, 5")
    k("v_add_u32 v3, s3, v1")
    k("s_movk_i32 s20, 1152")
    k("v_mul_lo_u32 v3, v3, s20")
    k("v_lshlrev_b32 v4, 3, v2")
    k("v_add_u32 v3, v3, v4")
    for i in range(9):
        k(f"buffer_load_dwordx2 v[{16+2*i}:{17+2*i}], v3, s[8:11], 0 offen offset:{128*i}")
    k(f"s_movk_i32 s20, {PITCH}")
    k("v_mul_lo_u32 v5, v1, s20")
    k("v_add_u32 v4, v5, v4")
    k("v_mov_b32 v5, 0"); k("v_mov_b32 v6, 0"); k("v_mov_b32 v7, 0"); k("v_mov_b32 v8, 0")
    k("s_mov_b32 s21, 0xffff0000")
    for i in range(9):
        k(f"s_waitcnt vmcnt({8-i})")
        k(f"ds_write_b64 v4, v[{16+2*i}:{17+2*i}] offset:{128*i}")
        for h in range(2):
            r = 16+2*i+h; lo = 40+2*(2*i+h); hi = lo+1
            k(f"v_lshlrev_b32 v{lo}, 16, v{r}")
            k(f"v_and_b32 v{hi}, s21, v{r}")
            k(f"v_add_f32 v5, v5, v{lo}")
            k(f"v_add_f32 v6, v6, v{hi}")
            k(f"v_fmac_f32 v7, v{lo}, v{lo}")
            k(f"v_fmac_f32 v8, v{hi}, v{hi}")
    k("v_add_f32 v5, v5, v6"); k("v_add_f32 v7, v7, v8")
    dpp_reduce16(k, [5,7])
    k("s_mov_b32 s22, 0x3ae38e39")
    k("v_mul_f32 v5, s22, v5")
    k("v_mul_f32 v7, s22, v7")
    k("v_fma_f32 v7, -v5, v5, v7")
    k("v_max_f32 v7, 0, v7")
    bf16round(k, 9, 5)
    bf16round(k, 7, 7)
    k("v_add_f32 v7, 0x3727c5ac, v7")
    bf16round(k, 7, 7)
    k("v_sqrt_f32 v7, v7")
    k.nop(1)
    bf16round(k, 7, 7)
    k("v_rcp_f32 v10, v7")
    k.nop(1)
    for e in range(36):
        k(f"v_sub_f32 v{40+e}, v{40+e}, v9")
    for i in range(18):
        k(f"v_cvt_pk_bf16_f32 v{80+i}, v{40+2*i}, v{41+2*i}")
    for i in range(18):
        k(f"v_lshlrev_b32 v{40+2*i}, 16, v{80+i}")
        k(f"v_and_b32 v{41+2*i}, s21, v{80+i}")
    for e in range(36):
        k(f"v_mul_f32 v{40+e}, v{40+e}, v10")
    for i in range(18):
        k(f"v_cvt_pk_bf16_f32 v{80+i}, v{40+2*i}, v{41+2*i}")
    for i in range(9):
        k(f"ds_write_b64 v4, v[{80+2*i}:{81+2*i}] offset:{UOFF+128*i}")
    k("v_lshrrev_b32 v11, 6, v0")
    k.nop(1)
    k("v_readfirstlane_b32 s23, v11")
    k("v_and_b32 v12, 63, v0")
    k("s_lshr_b32 s24, s23, 2")
    k("s_and_b32 s25, s23, 3")
    k("s_cmp_eq_u32 s24, 0")
    k(f"s_cselect_b32 s26, {WS_XT}, {WS_UT}")
    k(f"s_cselect_b32 s27, 0, {UOFF}")
    k("s_add_u32 s12, s6, s26"); k("s_addc_u32 s13, s7, 0"); k("s_and_b32 s13, s13, 0xffff")
    k(f"s_mov_b32 s14, {SZ_T}"); k("s_mov_b32 s15, 0x20000")
    k("v_lshrrev_b32 v13, 4, v12")
    k("v_lshlrev_b32 v13, 3, v13")
    k("v_bfe_u32 v14, v12, 2, 2")
    k("v_add_u32 v13, v13, v14")
    k(f"s_movk_i32 s20, {PITCH}")
    k("v_mul_lo_u32 v13, v13, s20")
    k("v_and_b32 v14, 3, v12")
    k("v_lshlrev_b32 v15, 3, v14")
    k("v_add_u32 v13, v13, v15")
    k("s_lshl_b32 s28, s25, 5")
    k("s_add_u32 s28, s28, s27")
    k("v_add_u32 v13, s28, v13")
    k("v_lshlrev_b32 v15, 4, v14")
    k("v_lshrrev_b32 v11, 2, v12")
    k("v_add_u32 v15, v15, v11")
    k("v_lshlrev_b32 v15, 2, v15")
    k("v_lshlrev_b32 v11, 12, v11")
    k("v_lshlrev_b32 v14, 4, v14")
    k("v_add_u32 v11, v11, v14")
    k("s_lshl_b32 s28, s2, 6")
    k("s_lshl_b32 s29, s25, 16")
    k("s_add_u32 s28, s28, s29")
    k("v_add_u32 v11, s28, v11")
    k("s_waitcnt lgkmcnt(0)")
    k("s_barrier")
    for bt in range(3):
        for q in range(3):
            i = bt*3+q
            k(f"ds_read_b64_tr_b16 v[{16+4*q}:{17+4*q}], v13 offset:{128*i}")
            k(f"ds_read_b64_tr_b16 v[{18+4*q}:{19+4*q}], v13 offset:{128*i+4*PITCH}")
        k("s_waitcnt lgkmcnt(0)")
        for q in range(3):
            for r in range(4):
                k(f"ds_bpermute_b32 v{32+16*bt+4*q+r}, v15, v{16+4*q+r}")
        k("s_waitcnt lgkmcnt(0)")
        for q in range(3):
            i = bt*3+q
            k(f"s_mov_b32 s30, {i*262144}")
            k(f"buffer_store_dwordx4 v[{32+16*bt+4*q}:{35+16*bt+4*q}], v11, s[12:15], s30 offen")
    k(f"s_branch {k.lab('end')}")
    k.label("kgen")
    KD=0; PAR=4608; PART=10752
    k("s_load_dwordx4 s[8:11], s[0:1], 8")
    k("s_load_dwordx4 s[12:15], s[0:1], 24")
    k("s_load_dwordx2 s[16:17], s[0:1], 40")
    k("s_sub_u32 s3, s2, 64")
    k("s_mul_i32 s3, s3, 3")
    k("s_waitcnt lgkmcnt(0)")
    SZP = 576*128*2
    k.srd(20, 8, 9, SZP); k.srd(24, 10, 11, SZP); k.srd(28, 12, 13, SZP); k.srd(32, 14, 15, SZP); k.srd(36, 16, 17, 576*2)
    k.srd_off(40, 6, 7, WS_KR0, SZ_KR); k.srd_off(44, 6, 7, WS_KR1, SZ_KR)
    k("v_cmp_gt_u32 vcc, 384, v0")
    k("s_and_saveexec_b64 s[48:49], vcc")
    k(f"s_cbranch_execz {k.lab('par_done')}")
    k("v_lshrrev_b32 v1, 7, v0")
    k("v_add_u32 v2, s3, v1")
    k("v_and_b32 v3, 127, v0")
    k("v_lshlrev_b32 v4, 7, v2")
    k("v_add_u32 v4, v4, v3")
    k("v_lshlrev_b32 v4, 1, v4")
    k("v_lshlrev_b32 v5, 1, v2")
    k("buffer_load_ushort v6, v4, s[20:23], 0 offen")
    k("buffer_load_ushort v7, v4, s[24:27], 0 offen")
    k("buffer_load_ushort v8, v4, s[28:31], 0 offen")
    k("buffer_load_ushort v9, v4, s[32:35], 0 offen")
    k("buffer_load_ushort v10, v5, s[36:39], 0 offen")
    k("s_waitcnt vmcnt(0)")
    for r in range(6,11): k(f"v_lshlrev_b32 v{r}, 16, v{r}")
    k("s_mov_b32 s50, 0x3fb8aa3b")
    k("v_mul_f32 v6, s50, v6"); k("v_mul_f32 v10, s50, v10")
    k("v_exp_f32 v6, v6"); k("v_exp_f32 v10, v10")
    k.nop(1)
    bf16round(k, 6, 6); bf16round(k, 10, 10)
    k("v_mul_f32 v6, v6, v10")
    k("v_mul_f32 v6, s50, v6")
    k("v_sub_f32 v6, 0, v6")
    k("v_mul_f32 v7, v7, v10")
    k("v_mul_f32 v7, 0.15915494, v7")
    k("v_mul_f32 v8, v8, v10"); k("v_add_f32 v8, v8, v8")
    k("v_mul_f32 v9, v9, v10"); k("v_add_f32 v9, v9, v9")
    k("v_lshlrev_b32 v1, 11, v1")
    k("v_lshlrev_b32 v3, 2, v3")
    k("v_add_u32 v1, v1, v3")
    k(f"ds_write_b32 v1, v6 offset:{PAR}"); k(f"ds_write_b32 v1, v7 offset:{PAR+512}"); k(f"ds_write_b32 v1, v8 offset:{PAR+1024}"); k(f"ds_write_b32 v1, v9 offset:{PAR+1536}")
    k.label("par_done")
    k("s_mov_b64 exec, s[48:49]")
    k("v_and_b32 v12, 63, v0")
    k("v_and_b32 v13, 15, v12")
    k("v_lshrrev_b32 v14, 4, v12")
    k("v_lshrrev_b32 v15, 6, v0")
    k("v_and_b32 v16, 7, v13"); k("v_lshrrev_b32 v17, 3, v13"); k("v_lshlrev_b32 v17, 7, v17"); k("v_add_u32 v16, v16, v17")
    k("v_bfe_u32 v17, v13, 2, 1"); k("v_lshlrev_b32 v17, 7, v17"); k("v_and_b32 v18, 3, v13"); k("v_lshlrev_b32 v18, 1, v18")
    k("v_add_u32 v17, v17, v18"); k("v_add_u32 v17, 256, v17")
    k("v_bfe_u32 v18, v13, 1, 2"); k("v_lshlrev_b32 v18, 7, v18"); k("v_and_b32 v19, 1, v13"); k("v_lshlrev_b32 v19, 2, v19")
    k("v_add_u32 v18, v18, v19"); k("v_add_u32 v18, 512, v18")
    k("v_cmp_gt_u32 vcc, 8, v13"); k.nop(2)
    k("v_cndmask_b32 v17, v18, v17, vcc")
    k("v_min_u32 v18, 8, v13"); k("v_lshlrev_b32 v18, 7, v18"); k("v_add_u32 v18, 1024, v18")
    k("v_lshlrev_b32 v19, 3, v13")
    for r in (16,17,18,19): k(f"v_cvt_f32_u32 v{r}, v{r}")
    k("v_lshlrev_b32 v20, 6, v15"); k("v_lshlrev_b32 v21, 4, v14"); k("v_add_u32 v20, v20, v21")
    k("s_movk_i32 s50, 3072")
    k("v_mul_lo_u32 v21, v15, s50"); k("v_lshlrev_b32 v22, 4, v12"); k("v_add_u32 v21, v21, v22")
    k("s_waitcnt lgkmcnt(0)")
    k("s_barrier")
    def entries(src_p, zr, zi, out_re, out_im, tmp):
        for m in range(4): k(f"v_mul_f32 v{out_re+m}, v{zr+m}, v{src_p}")
        for m in range(4): k(f"v_mul_f32 v{out_im+m}, v{zi+m}, v{src_p}")
        for m in range(4): k(f"v_exp_f32 v{out_re+m}, v{out_re+m}")
        for m in range(4): k(f"v_fract_f32 v{out_im+m}, v{out_im+m}")
        for m in range(4): k(f"v_cos_f32 v{tmp+m}, v{out_im+m}")
        for m in range(4): k(f"v_sin_f32 v{out_im+m}, v{out_im+m}")
        k.nop(1)
    for ch in range(3):
        ZR=24; ZI=28; CR=32; CI=36
        k(f"ds_read_b128 v[{ZR}:{ZR+3}], v20 offset:{PAR+ch*2048}")
        k(f"ds_read_b128 v[{ZI}:{ZI+3}], v20 offset:{PAR+ch*2048+512}")
        k(f"ds_read_b128 v[{CR}:{CR+3}], v20 offset:{PAR+ch*2048+1024}")
        k(f"ds_read_b128 v[{CI}:{CI+3}], v20 offset:{PAR+ch*2048+1536}")
        k("s_waitcnt lgkmcnt(2)")
        E=40; S=44; T=48
        entries(19, ZR, ZI, E, S, T)
        for m in range(4): k(f"v_mul_f32 v{T+m}, v{E+m}, v{T+m}")
        for m in range(4): k(f"v_mul_f32 v{S+m}, v{E+m}, v{S+m}")
        k("s_waitcnt lgkmcnt(0)")
        for m in range(4): k(f"v_mul_f32 v{E+m}, v{CR+m}, v{T+m}")
        for m in range(4): k(f"v_fma_f32 v{E+m}, -v{CI+m}, v{S+m}, v{E+m}")
        for m in range(4): k(f"v_mul_f32 v{S+m}, v{CR+m}, v{S+m}")
        for m in range(4): k(f"v_fma_f32 v{S+m}, v{CI+m}, v{T+m}, v{S+m}")
        BF=52
        for m in range(4): k(f"v_cvt_pk_bf16_f32 v{BF+m}, v{E+m}, v{S+m}")
        for t in range(3):
            entries(16+t, ZR, ZI, E, S, T)
            for m in range(4): k(f"v_mul_f32 v{T+m}, v{E+m}, v{T+m}")
            for m in range(4): k(f"v_mul_f32 v{S+m}, -v{E+m}, v{S+m}")
            AF=56+4*t
            for m in range(4): k(f"v_cvt_pk_bf16_f32 v{AF+m}, v{T+m}, v{S+m}")
        k.nop(2)
        for t in range(3):
            k(f"v_mfma_f32_16x16x32_bf16 v[{68+4*t}:{71+4*t}], v[{56+4*t}:{59+4*t}], v[52:55], 0")
        k.nop(10)
        for t in range(3):
            k(f"ds_write_b128 v21, v[{68+4*t}:{71+4*t}] offset:{PART+ch*24576+t*1024}")
    k("s_waitcnt lgkmcnt(0)")
    k("s_barrier")
    def reduce_group(gidx_reg):
        k(f"v_cmp_le_u32 vcc, 192, v{gidx_reg}"); k.nop(2)
        k("v_cndmask_b32 v30, 0, 1, vcc")
        k(f"v_cmp_le_u32 vcc, 384, v{gidx_reg}"); k.nop(2)
        k("v_cndmask_b32 v31, 0, 1, vcc")
        k("v_add_u32 v30, v30, v31")
        k("s_movk_i32 s50, 192")
        k("v_mul_lo_u32 v31, v30, s50")
        k(f"v_sub_u32 v31, v{gidx_reg}, v31")
        k("s_movk_i32 s50, 24576")
        k("v_mul_lo_u32 v32, v30, s50")
        k("v_lshlrev_b32 v33, 4, v31")
        k("v_add_u32 v32, v32, v33")
        for w in range(8):
            k(f"ds_read_b128 v[{40+4*w}:{43+4*w}], v32 offset:{PART+w*3072}")
        k("v_and_b32 v33, 15, v31"); k("s_movk_i32 s50, 96"); k("v_mul_lo_u32 v33, v33, s50")
        k("v_lshrrev_b32 v34, 6, v31"); k("v_lshlrev_b32 v34, 5, v34"); k("v_add_u32 v33, v33, v34")
        k("v_bfe_u32 v34, v31, 4, 2"); k("v_lshlrev_b32 v34, 3, v34"); k("v_add_u32 v33, v33, v34")
        k("s_movk_i32 s50, 1536"); k("v_mul_lo_u32 v34, v30, s50"); k("v_add_u32 v33, v33, v34")
        k("s_waitcnt lgkmcnt(0)")
        for w in range(1,8):
            for r in range(4): k(f"v_add_f32 v{40+r}, v{40+r}, v{40+4*w+r}")
        k("v_cvt_pk_bf16_f32 v44, v40, v41"); k("v_cvt_pk_bf16_f32 v45, v42, v43")
        k(f"ds_write_b64 v33, v[44:45] offset:{KD}")
    reduce_group(0)
    k("v_cmp_gt_u32 vcc, 64, v0")
    k("s_and_saveexec_b64 s[48:49], vcc")
    k(f"s_cbranch_execz {k.lab('red_done')}")
    k("v_add_u32 v29, 512, v0")
    reduce_group(29)
    k.label("red_done")
    k("s_mov_b64 exec, s[48:49]")
    k("v_and_b32 v1, 255, v0")
    k("v_lshlrev_b32 v2, 3, v1")
    k("v_sub_u32 v2, 2048, v2")
    for i in range(9):
        a = 80+i
        k(f"v_subrev_u32 v3, {i}, v2")
        k("v_cvt_f32_u32 v3, v3")
        k("v_cvt_pk_bf16_f32 v3, v3, v3")
        k("v_lshlrev_b32 v3, 16, v3")
        k("v_cvt_u32_f32 v3, v3")
        k("v_lshrrev_b32 v4, 7, v3")
        k("v_bfe_u32 v5, v3, 3, 4")
        k("v_and_b32 v6, 7, v3")
        k("v_lshlrev_b32 v7, 3, v4"); k("v_add_u32 v7, v7, v6")
        k("v_lshlrev_b32 v8, 2, v4"); k("v_lshrrev_b32 v9, 1, v6"); k("v_add_u32 v8, v8, v9"); k("v_add_u32 v8, 8, v8")
        k("v_lshlrev_b32 v9, 1, v4"); k("v_lshrrev_b32 v10, 2, v6"); k("v_add_u32 v9, v9, v10"); k("v_add_u32 v9, 16, v9")
        k("v_add_u32 v10, 24, v4")
        k("v_cmp_gt_u32 vcc, 8, v4"); k.nop(2); k("v_cndmask_b32 v10, v10, v9, vcc")
        k("v_cmp_gt_u32 vcc, 4, v4"); k.nop(2); k("v_cndmask_b32 v10, v10, v8, vcc")
        k("v_cmp_gt_u32 vcc, 2, v4"); k.nop(2); k("v_cndmask_b32 v10, v10, v7, vcc")
        k("v_mul_u32_u24 v5, 48, v5")
        k("v_add_u32 v5, v5, v10")
        k(f"v_lshlrev_b32 v{a}, 1, v5")
    k("v_lshrrev_b32 v2, 8, v0")
    k("s_movk_i32 s50, 1536")
    k("v_mul_lo_u32 v3, v2, s50")
    for i in range(9): k(f"v_add_u32 v{80+i}, v{80+i}, v3")
    k("v_add_u32 v4, s3, v2"); k("s_movk_i32 s50, 4160"); k("v_mul_lo_u32 v4, v4, s50")
    k("v_lshlrev_b32 v5, 4, v1"); k("v_add_u32 v4, v4, v5")
    k("s_waitcnt lgkmcnt(0)")
    k("s_barrier")
    def expand(ldsoff, goff_reg, k3off):
        for i in range(9): k(f"ds_read_u16 v{40+i}, v{80+i} offset:{KD+ldsoff}")
        k(f"ds_read_u16 v50, v{k3off} offset:{KD+ldsoff}")
        k("s_waitcnt lgkmcnt(0)")
        for d in range(4):
            k(f"v_lshl_or_b32 v{52+d}, v{41+2*d}, 16, v{40+2*d}")
            k(f"v_lshl_or_b32 v{56+d}, v{42+2*d}, 16, v{41+2*d}")
        k(f"buffer_store_dwordx4 v[52:55], v{goff_reg}, s[40:43], 0 offen")
        k(f"buffer_store_dwordx4 v[56:59], v{goff_reg}, s[44:47], 0 offen")
        k("v_cmp_gt_u32 vcc, 4, v1")
        k("s_and_saveexec_b64 s[48:49], vcc")
        lab = k.newlab("tail")
        k(f"s_cbranch_execz {k.lab(lab)}")
        k("v_cmp_eq_u32 vcc, 0, v1"); k.nop(2)
        k("v_cndmask_b32 v60, 0, v50, vcc")
        k("v_mov_b32 v61, 0"); k("v_mov_b32 v62, 0"); k("v_mov_b32 v63, 0")
        k("v_mov_b32 v64, 0"); k("v_mov_b32 v65, 0"); k("v_mov_b32 v66, 0"); k("v_mov_b32 v67, 0")
        k(f"v_add_u32 v11, 4096, v{goff_reg}")
        k("buffer_store_dwordx4 v[60:63], v11, s[40:43], 0 offen")
        k("buffer_store_dwordx4 v[64:67], v11, s[44:47], 0 offen")
        k.label(lab)
        k("s_mov_b64 exec, s[48:49]")
    expand(0, 4, 3)
    k("v_cmp_gt_u32 vcc, 256, v0")
    k("s_and_saveexec_b64 s[52:53], vcc")
    k(f"s_cbranch_execz {k.lab('end')}")
    k(f"v_add_u32 v4, {2*4160}, v4")
    k("s_nop 1")
    expand(2*1536, 4, 3)
    k.label("end")
    return k
```

```python
from asmlib import *
from k1 import *
K2_RW=21248; K2_LDS=4*K2_RW
def gen_k2():
    k = Kern("k2_kernel", vgpr=224, sgpr=64)
    k("s_cmp_ge_u32 s2, 144")
    k(f"s_cbranch_scc1 {k.lab('end')}")
    k("s_load_dwordx2 s[6:7], s[0:1], 104")
    k("s_load_dwordx2 s[4:5], s[0:1], 48")
    k("v_lshrrev_b32 v1, 6, v0")
    k("v_and_b32 v2, 63, v0")
    k("v_readfirstlane_b32 s3, v1")
    k("s_lshl_b32 s20, s2, 2")
    k("s_add_u32 s20, s20, s3")
    k(f"s_mul_i32 s21, s3, {K2_RW}")
    k("s_waitcnt lgkmcnt(0)")
    k.srd_off(8, 6, 7, WS_KR0, SZ_KR); k.srd_off(12, 6, 7, WS_KR1, SZ_KR)
    k.srd_off(24, 6, 7, WS_UT, SZ_T); k.srd_off(28, 6, 7, WS_XT, SZ_T); k.srd_off(32, 6, 7, WS_HT, SZ_T)
    k("s_lshl_b32 s22, s20, 1"); k("s_and_b32 s23, s22, -4")
    k("s_load_dword s36, s[4:5], s23")
    k("v_lshlrev_b32 v3, 4, v2")
    k("s_mul_i32 s37, s20, 4160")
    k("v_add_u32 v4, s37, v3")
    k("v_add_u32 v5, 4, v4")
    for sg in range(4):
        srd = "s[8:11]" if sg%2==0 else "s[12:15]"
        vo = "v4" if sg<2 else "v5"
        k(f"s_add_u32 m0, s21, {sg*4160}")
        k("s_nop 0")
        for i in range(4):
            k(f"buffer_load_dwordx4 {vo}, {srd}, 0 offen offset:{1024*i} lds")
    k("s_movk_i32 s38, 4096")
    k("s_mov_b64 exec, 0xf")
    for sg in range(4):
        srd = "s[8:11]" if sg%2==0 else "s[12:15]"
        vo = "v4" if sg<2 else "v5"
        k(f"s_add_u32 m0, s21, {sg*4160+4096}")
        k("s_nop 0")
        k(f"buffer_load_dwordx4 {vo}, {srd}, s38 offen lds")
    k("s_mov_b64 exec, -1")
    k("s_lshl_b32 s37, s20, 12")
    k("v_add_u32 v6, s37, v3")
    k(f"s_add_u32 m0, s21, {16640+480}")
    k("s_nop 0")
    for i in range(4):
        k(f"buffer_load_dwordx4 v6, s[24:27], 0 offen offset:{1024*i} lds")
    k("v_and_b32 v7, 15, v2"); k("v_lshrrev_b32 v8, 4, v2")
    k("v_lshlrev_b32 v9, 5, v7"); k("v_lshlrev_b32 v10, 3, v8"); k("v_add_u32 v9, v9, v10")
    k("v_add_u32 v10, s37, v9")
    for r in range(8):
        k(f"buffer_load_dwordx2 v[{176+2*r}:{177+2*r}], v10, s[28:31], 0 offen offset:{512*r}")
    k("v_mov_b32 v12, 0"); k("v_mov_b32 v13, 0"); k("v_mov_b32 v14, 0"); k("v_mov_b32 v15, 0")
    k(f"s_add_u32 s39, s21, 16640")
    k("v_add_u32 v11, s39, v3")
    k("s_mov_b64 exec, 0x3fffffff")
    k("ds_write_b128 v11, v[12:15]")
    k("s_mov_b64 exec, -1")
    k("v_and_b32 v11, 3, v7")
    k("v_sub_u32 v12, 4, v11"); k("v_and_b32 v12, 3, v12")
    k("v_add_u32 v13, v7, v12")
    k("s_movk_i32 s39, 4160")
    k("v_mul_lo_u32 v12, v12, s39")
    k("v_lshlrev_b32 v13, 1, v13")
    k("v_sub_u32 v12, v12, v13")
    k("v_lshlrev_b32 v13, 4, v8")
    k("v_add_u32 v12, v12, v13")
    k("s_add_u32 s39, s21, 32")
    k("v_add_u32 v12, s39, v12")
    k("v_lshlrev_b32 v14, 5, v7"); k("v_add_u32 v14, v14, v13")
    k(f"s_add_u32 s39, s21, {17088-448}")
    k("v_add_u32 v14, s39, v14")
    k(f"s_add_u32 s39, s21, {16640+480}")
    k("v_add_u32 v15, s39, v9")
    for r in range(16,48): k(f"v_mov_b32 v{r}, 0")
    k("s_waitcnt vmcnt(0) lgkmcnt(0)")
    AB=[112,144]; BB=[48,80]
    def reads(q):
        buf=q&1; L=[]
        for s in range(8):
            L.append(f"ds_read_b128 v[{BB[buf]+4*s}:{BB[buf]+4*s+3}], v14 offset:{512*s+64*(7-q)}")
        for d in range(8):
            o=512*(7-d)+64*(7-q)
            L.append(f"ds_read_b64 v[{AB[buf]+4*d}:{AB[buf]+4*d+1}], v12 offset:{o}")
            L.append(f"ds_read_b64 v[{AB[buf]+4*d+2}:{AB[buf]+4*d+3}], v12 offset:{o+8}")
        return L
    for l in reads(0): k(l)
    for q in range(8):
        buf=q&1
        k("s_waitcnt lgkmcnt(0)")
        nxt = reads(q+1) if q<7 else []
        i=0
        for d in range(8):
            for s in range(8-d):
                r=s+d
                k(f"v_mfma_f32_16x16x32_bf16 v[{16+4*r}:{19+4*r}], v[{AB[buf]+4*d}:{AB[buf]+4*d+3}], v[{BB[buf]+4*s}:{BB[buf]+4*s+3}], v[{16+4*r}:{19+4*r}]")
                if nxt: k(nxt.pop(0))
    for r in range(8):
        k(f"ds_read_b64 v[{48+2*r}:{49+2*r}], v15 offset:{512*r}")
    k("s_and_b32 s22, s22, 2"); k("s_cmp_eq_u32 s22, 0")
    k("s_lshl_b32 s37, s36, 16"); k("s_and_b32 s38, s36, 0xffff0000")
    k("s_cmp_eq_u32 s22, 0")
    k("s_cselect_b32 s36, s37, s38")
    k("s_mov_b32 s39, 0xffff0000")
    k.nop(8)
    k("s_waitcnt lgkmcnt(0)")
    for r in range(8):
        y=16+4*r; T=64; U=72; X=80
        k(f"v_cvt_pk_bf16_f32 v{T}, v{y}, v{y+1}"); k(f"v_cvt_pk_bf16_f32 v{T+1}, v{y+2}, v{y+3}")
        for h in range(2):
            k(f"v_lshlrev_b32 v{y+2*h}, 16, v{T+h}"); k(f"v_and_b32 v{y+2*h+1}, s39, v{T+h}")
            k(f"v_lshlrev_b32 v{U+2*h}, 16, v{48+2*r+h}"); k(f"v_and_b32 v{U+2*h+1}, s39, v{48+2*r+h}")
        for e in range(4): k(f"v_mul_f32 v{U+e}, s36, v{U+e}")
        k(f"v_cvt_pk_bf16_f32 v{T}, v{U}, v{U+1}"); k(f"v_cvt_pk_bf16_f32 v{T+1}, v{U+2}, v{U+3}")
        for h in range(2):
            k(f"v_lshlrev_b32 v{U+2*h}, 16, v{T+h}"); k(f"v_and_b32 v{U+2*h+1}, s39, v{T+h}")
        for e in range(4): k(f"v_add_f32 v{y+e}, v{y+e}, v{U+e}")
        k(f"v_cvt_pk_bf16_f32 v{T}, v{y}, v{y+1}"); k(f"v_cvt_pk_bf16_f32 v{T+1}, v{y+2}, v{y+3}")
        for h in range(2):
            k(f"v_lshlrev_b32 v{y+2*h}, 16, v{T+h}"); k(f"v_and_b32 v{y+2*h+1}, s39, v{T+h}")
            k(f"v_lshlrev_b32 v{X+2*h}, 16, v{176+2*r+h}"); k(f"v_and_b32 v{X+2*h+1}, s39, v{176+2*r+h}")
        for e in range(4): k(f"v_add_f32 v{y+e}, v{y+e}, v{X+e}")
        k(f"v_cvt_pk_bf16_f32 v{192+2*r}, v{y}, v{y+1}"); k(f"v_cvt_pk_bf16_f32 v{193+2*r}, v{y+2}, v{y+3}")
        k(f"buffer_store_dwordx2 v[{192+2*r}:{193+2*r}], v10, s[32:35], 0 offen offset:{512*r}")
    k.label("end")
    return k
```

```python
from asmlib import *
from k1 import *
K25_LDS=2048
def gen_k25():
    k = Kern("k25_kernel", vgpr=96, sgpr=64)
    k("s_cmp_ge_u32 s2, 256")
    k(f"s_cbranch_scc1 {k.lab('end')}")
    k("s_load_dwordx2 s[6:7], s[0:1], 104")
    k("s_waitcnt lgkmcnt(0)")
    k.srd_off(8, 6, 7, WS_HT, SZ_T); k.srd_off(12, 6, 7, WS_X2T, SZ_T)
    k("v_lshlrev_b32 v1, 12, v0")
    k("s_lshl_b32 s3, s2, 4")
    k("v_add_u32 v1, s3, v1")
    k(f"s_mov_b32 s20, {192*4096}"); k(f"s_mov_b32 s21, {384*4096}")
    k("buffer_load_dwordx4 v[8:11], v1, s[8:11], 0 offen")
    k("buffer_load_dwordx4 v[12:15], v1, s[8:11], s20 offen")
    k("buffer_load_dwordx4 v[16:19], v1, s[8:11], s21 offen")
    k("s_mov_b32 s22, 0xffff0000")
    k("s_waitcnt vmcnt(0)")
    for c in range(3):
        for d in range(4):
            k(f"v_lshlrev_b32 v{24+8*c+2*d}, 16, v{8+4*c+d}")
            k(f"v_and_b32 v{25+8*c+2*d}, s22, v{8+4*c+d}")
    for t in range(8):
        k(f"v_add_f32 v{48+t}, v{24+t}, v{32+t}")
        k(f"v_mul_f32 v{56+t}, v{24+t}, v{24+t}")
    for t in range(8):
        k(f"v_add_f32 v{48+t}, v{48+t}, v{40+t}")
        k(f"v_fmac_f32 v{56+t}, v{32+t}, v{32+t}")
    for t in range(8):
        k(f"v_fmac_f32 v{56+t}, v{40+t}, v{40+t}")
    dpp_reduce16(k, list(range(48,64)))
    k("v_and_b32 v2, 15, v0")
    k("v_lshrrev_b32 v3, 4, v0"); k("v_lshlrev_b32 v3, 6, v3")
    k("v_cmp_eq_u32 vcc, 0, v2")
    k("s_and_saveexec_b64 s[24:25], vcc")
    for q in range(4): k(f"ds_write_b128 v3, v[{48+4*q}:{51+4*q}] offset:{16*q}")
    k("s_mov_b64 exec, s[24:25]")
    k("s_waitcnt lgkmcnt(0)"); k("s_barrier")
    k("v_cmp_gt_u32 vcc, 8, v0")
    k("s_and_saveexec_b64 s[24:25], vcc")
    k(f"s_cbranch_execz {k.lab('st_done')}")
    k("v_lshlrev_b32 v3, 2, v0")
    for r in range(12):
        k(f"ds_read_b32 v{64+r}, v3 offset:{64*r}")
        k(f"ds_read_b32 v{76+r}, v3 offset:{64*r+32}")
        if r%4==3: k("s_waitcnt lgkmcnt(0)")
    for r in range(1,12):
        k(f"v_add_f32 v64, v64, v{64+r}"); k(f"v_add_f32 v76, v76, v{76+r}")
    k("s_mov_b32 s23, 0x3ae38e39")
    k("v_mul_f32 v64, s23, v64"); k("v_mul_f32 v76, s23, v76")
    k("v_fma_f32 v76, -v64, v64, v76"); k("v_max_f32 v76, 0, v76")
    bf16round(k, 64, 64); bf16round(k, 76, 76)
    k("v_add_f32 v76, 0x3727c5ac, v76"); bf16round(k, 76, 76)
    k("v_sqrt_f32 v76, v76"); k.nop(1); bf16round(k, 76, 76)
    k("v_rcp_f32 v76, v76"); k.nop(1)
    k("ds_write_b32 v3, v64 offset:1024"); k("ds_write_b32 v3, v76 offset:1056")
    k.label("st_done")
    k("s_mov_b64 exec, s[24:25]")
    k("s_waitcnt lgkmcnt(0)"); k("s_barrier")
    k("v_mov_b32 v3, 0")
    for q in range(4): k(f"ds_read_b128 v[{48+4*q}:{51+4*q}], v3 offset:{1024+16*q}")
    k("s_waitcnt lgkmcnt(0)")
    for c in range(3):
        for t in range(8): k(f"v_sub_f32 v{24+8*c+t}, v{24+8*c+t}, v{48+t}")
        for d in range(4): k(f"v_cvt_pk_bf16_f32 v{8+4*c+d}, v{24+8*c+2*d}, v{25+8*c+2*d}")
        for d in range(4):
            k(f"v_lshlrev_b32 v{24+8*c+2*d}, 16, v{8+4*c+d}")
            k(f"v_and_b32 v{25+8*c+2*d}, s22, v{8+4*c+d}")
        for t in range(8): k(f"v_mul_f32 v{24+8*c+t}, v{24+8*c+t}, v{56+t}")
        for d in range(4): k(f"v_cvt_pk_bf16_f32 v{8+4*c+d}, v{24+8*c+2*d}, v{25+8*c+2*d}")
    k("buffer_store_dwordx4 v[8:11], v1, s[12:15], 0 offen")
    k("buffer_store_dwordx4 v[12:15], v1, s[12:15], s20 offen")
    k("buffer_store_dwordx4 v[16:19], v1, s[12:15], s21 offen")
    k.label("end")
    return k
```

```python
from asmlib import *
from k1 import *
from lgk import *
K3_S=34816; K3_LDS=4*K3_S
SZ_W=576*4608*2

def gen_k3(src_ws=WS_X2T):
    k = Kern("k3_kernel", vgpr=256, acc=256, sgpr=96)
    S=K3_S
    k("s_cmp_ge_u32 s2, 256")
    k(f"s_cbranch_scc1 {k.lab('end')}")
    k("s_load_dwordx4 s[4:7], s[0:1], 64")
    k("s_load_dwordx2 s[8:9], s[0:1], 104")
    k("v_lshrrev_b32 v1, 6, v0")
    k("v_and_b32 v2, 63, v0")
    k("v_readfirstlane_b32 s3, v1")
    k("s_and_b32 s10, s2, 7"); k("s_lshr_b32 s11, s2, 3")
    k("s_and_b32 s12, s11, 3"); k("s_lshl_b32 s10, s10, 2"); k("s_add_u32 s10, s10, s12")
    k("s_lshr_b32 s11, s11, 2")
    k("s_and_b32 s12, s3, 3")
    k("s_lshr_b32 s13, s3, 2")
    k("s_waitcnt lgkmcnt(0)")
    k.srd(16, 4, 5, SZ_W); k.srd(20, 6, 7, SZ_W)
    k.srd_off(24, 8, 9, src_ws, SZ_T); k.srd_off(28, 8, 9, WS_H, SZ_H)
    k("v_lshrrev_b32 v17, 2, v2")
    k("v_and_b32 v18, 3, v2")
    k("s_movk_i32 s14, 288")
    k("v_mul_lo_u32 v4, v17, s14")
    k("v_lshlrev_b32 v19, 3, v18")
    k("v_add_u32 v4, v4, v19")
    k("s_mul_i32 s14, s13, 160")
    k("v_add_u32 v4, s14, v4")
    k(f"v_add_u32 v5, {S}, v4")
    k("v_and_b32 v20, 7, v17")
    k("v_lshlrev_b32 v21, 9, v17")
    k("v_add_u32 v21, v21, v19")
    k("v_add_u32 v21, 18432, v21")
    for tt in range(4):
        k("s_lshl_b32 s14, s12, 2"); k(f"s_add_u32 s14, s14, {tt}")
        k("s_and_b32 s15, s14, 7"); k("s_and_b32 s14, s14, 8")
        k("v_xor_b32 v22, s15, v20"); k("v_or_b32 v22, s14, v22")
        k("v_lshlrev_b32 v22, 5, v22")
        k(f"v_add_u32 v{10+tt}, v21, v22")
        k(f"v_add_u32 v{6+tt}, {S}, v{10+tt}")
    k("v_mov_b32 v15, 0"); k("v_mov_b32 v16, 0")
    k("s_cmp_eq_u32 s13, 0")
    k(f"s_cbranch_scc0 {k.lab('dmaW')}")
    k("v_lshrrev_b32 v17, 5, v2"); k("s_lshl_b32 s14, s12, 1"); k("v_add_u32 v17, s14, v17")
    k("v_and_b32 v18, 31, v2"); k("v_lshrrev_b32 v19, 1, v18")
    k("v_and_b32 v20, 7, v17"); k("v_xor_b32 v20, v19, v20")
    k("v_lshlrev_b32 v20, 5, v20"); k("v_and_b32 v18, 1, v18"); k("v_lshlrev_b32 v18, 4, v18"); k("v_add_u32 v20, v20, v18")
    k("v_lshlrev_b32 v17, 12, v17"); k("v_add_u32 v14, v17, v20")
    k("s_lshl_b32 s14, s11, 9"); k("v_add_u32 v14, s14, v14")
    k(f"s_branch {k.lab('dma_done')}")
    k.label("dmaW")
    for q,reg in ((0,14),(1,15),(2,16)):
        if q<2:
            k(f"s_lshl_b32 s14, s12, 6"); k(f"s_add_u32 s14, s14, {256*q}")
        else:
            k("s_movk_i32 s14, 512")
        k("v_add_u32 v17, s14, v2")
        k("s_mov_b32 s15, 0x0e38e38f")
        k("v_mul_hi_u32 v18, v17, s15")
        k("v_mul_u32_u24 v19, 18, v18")
        k("v_sub_u32 v19, v17, v19")
        k("s_movk_i32 s15, 9216")
        k("v_mul_lo_u32 v18, v18, s15")
        k("v_lshlrev_b32 v19, 4, v19")
        k(f"v_add_u32 v{reg}, v18, v19")
        k("s_mul_i32 s15, s10, 288")
        k(f"v_add_u32 v{reg}, s15, v{reg}")
    k.label("dma_done")
    k("s_mov_b32 s32, 0"); k("s_mov_b32 s33, 0"); k("s_mov_b32 s34, 0")
    k(f"s_mov_b32 s35, {2*S}")
    k("s_lshl_b32 s37, s12, 10")

    def dma_list(typ):
        L=[]
        if typ==0:
            for jj in range(4):
                L.append([f"s_add_u32 s38, s32, s37", f"s_add_u32 m0, s38, {18432+jj*4096}", f"s_add_u32 s39, s34, {jj*32768}",
                          f"buffer_load_dwordx4 v14, s[24:27], s39 offen lds"])
        else:
            for mat in range(2):
                srd = "s[16:19]" if mat==0 else "s[20:23]"
                for q in range(2):
                    L.append([f"s_add_u32 s38, s32, s37", f"s_add_u32 m0, s38, {mat*9216+q*4096}", "s_nop 0",
                              f"buffer_load_dwordx4 v{14+q}, {srd}, s33 offen lds"])
        return L
    def dma_extra():
        l1=k.newlab("x"); l2=k.newlab("x")
        k("s_cmp_eq_u32 s12, 0"); k(f"s_cbranch_scc0 {k.lab(l1)}")
        k("s_add_u32 m0, s32, 8192"); k("s_nop 0"); k("buffer_load_dwordx4 v16, s[16:19], s33 offen lds")
        k(f"s_branch {k.lab(l2)}")
        k.label(l1)
        k("s_cmp_eq_u32 s12, 1"); k(f"s_cbranch_scc0 {k.lab(l2)}")
        k(f"s_add_u32 m0, s32, {9216+8192}"); k("s_nop 0"); k("buffer_load_dwordx4 v16, s[20:23], s33 offen lds")
        k.label(l2)
    def dma_advance():
        k(f"s_add_u32 s32, s32, {S}"); k(f"s_cmp_eq_u32 s32, {4*S}"); k("s_cselect_b32 s32, 0, s32")
        k(f"s_add_u32 s33, s33, {32*9216}"); k(f"s_add_u32 s34, s34, {32*4096}")

    ACC=96; BB=[32,48]; AR=64
    def body(typ):
        nT = 5 if typ==0 else 4
        frags = [(t,mat) for t in range(nT) for mat in range(2)]
        nA = len(frags); R = 5 if typ==0 else 4; PF=R-1
        def acc(a,tt): return ACC + (a*4+tt)*4
        def a_reads(c, par):
            t,mat = frags[c]; reg = AR + 4*(c % R if True else 0)
            return t,mat
        for st in range(3):
            for grp in dma_list(typ):
                for l in grp: k(l)
            if typ==1: dma_extra()
            dma_advance()
        k("s_waitcnt vmcnt(8)")
        k("s_barrier")
        T = LgkTracker(k)
        seq = [0]
        def rdA(cg, a, par):
            t,mat = frags[a]; reg = AR + 4*(cg % R); va = 4+par
            off = mat*9216 + t*32
            T.issue(f"ds_read_b64_tr_b16 v[{reg}:{reg+1}], v{va} offset:{off}", ("A",cg))
            T.issue(f"ds_read_b64_tr_b16 v[{reg+2}:{reg+3}], v{va} offset:{off+4608}", ("A",cg))
        def rdA1(cg, a, par, h):
            t,mat = frags[a]; reg = AR + 4*(cg % R); va = 4+par
            off = mat*9216 + t*32 + 4608*h
            T.issue(f"ds_read_b64_tr_b16 v[{reg+2*h}:{reg+2*h+1}], v{va} offset:{off}", ("A",cg))
        def rdB1(stepg, tt, h):
            buf = BB[stepg&1]; vb = (6 if (stepg&1) else 10)+tt
            T.issue(f"ds_read_b64_tr_b16 v[{buf+4*tt+2*h}:{buf+4*tt+2*h+1}], v{vb} offset:{8192*h}", ("B",stepg))
        for tt in range(4):
            rdB1(0,tt,0); rdB1(0,tt,1)
        for a in range(PF): rdA(a, a, 0)
        for r in range(ACC, ACC+nA*16): k(f"v_mov_b32 v{r}, 0")
        T.drain()
        for tt in range(4): k(f"v_add_u32 v{10+tt}, {2*S}, v{10+tt}")
        k("s_mov_b32 s36, 0")
        loop = k.newlab("loop")
        def step(sg, emit):
            T.emit = emit
            par = sg&1
            if emit:
                k("s_waitcnt vmcnt(4)"); k("s_barrier")
            dl = dma_list(typ)
            breads = [(tt,h) for tt in range(4) for h in range(2)]
            for a in range(nA):
                cg = sg*nA + a
                tags = {("A",cg)}
                if a==0: tags.add(("B",sg))
                T.need(tags)
                reg = AR + 4*(cg % R)
                cn = cg + PF; an = a + PF
                npar = par if an < nA else 1-par
                an_ = an if an < nA else an - nA
                for tt in range(4):
                    if emit:
                        k(f"v_mfma_f32_16x16x32_bf16 v[{acc(a,tt)}:{acc(a,tt)+3}], v[{reg}:{reg+3}], v[{BB[par]+4*tt}:{BB[par]+4*tt+3}], v[{acc(a,tt)}:{acc(a,tt)+3}]")
                    if tt==0: rdA1(cn, an_, npar, 0)
                    if tt==1: rdA1(cn, an_, npar, 1)
                    if tt==2 and breads:
                        b = breads.pop(0); rdB1(sg+1, b[0], b[1])
                    if tt==3:
                        if dl:
                            grp = dl.pop(0)
                            if emit:
                                for l in grp: k(l)
                        elif a==4 and typ==1 and emit:
                            dma_extra()
                if a==nA-PF-1 and emit:
                    pass
            if emit:
                dma_advance()
                k(f"v_add_u32 v{4+par}, s35, v{4+par}")
                if (sg+1)&1:
                    for tt in range(4): k(f"v_add_u32 v{6+tt}, s35, v{6+tt}")
                else:
                    for tt in range(4): k(f"v_subrev_u32 v{10+tt}, s35, v{10+tt}")
        q0 = list(T.q)
        step(0, False); step(1, False)
        k.label(loop)
        step(2, True); step(3, True)
        T.emit=True
        k("s_sub_u32 s35, 0, s35")
        k("s_add_u32 s36, s36, 1"); k("s_cmp_lt_u32 s36, 9")
        k(f"s_cbranch_scc1 {k.lab(loop)}")
        k("s_waitcnt lgkmcnt(0)")
        k.nop(10)
        k("v_and_b32 v17, 15, v2"); k("s_lshl_b32 s14, s11, 8"); k("s_lshl_b32 s15, s12, 6"); k("s_add_u32 s14, s14, s15")
        k("v_add_u32 v17, s14, v17"); k("s_movk_i32 s15, 9216"); k("v_mul_lo_u32 v17, v17, s15")
        k("v_lshrrev_b32 v18, 4, v2"); k("v_lshlrev_b32 v18, 4, v18"); k("v_add_u32 v17, v17, v18")
        t0 = 0 if typ==0 else 5
        k("s_mul_i32 s40, s10, 9")
        for t in range(nT):
            k(f"s_add_u32 s41, s40, {t0+t}"); k("s_lshr_b32 s42, s41, 1"); k("s_lshl_b32 s42, s42, 6")
            k("s_and_b32 s41, s41, 1"); k("s_lshl_b32 s41, s41, 3"); k(f"s_add_u32 s{44+t}, s42, s41")
        for tt in range(4):
            if tt>0: k(f"v_add_u32 v17, {16*9216}, v17")
            for t in range(nT):
                g = acc(2*t,tt); u = acc(2*t+1,tt); o = 20+2*(t%4)
                for r in range(4):
                    k(f"v_max_f32 v{g+r}, 0, v{g+r}")
                for r in range(4):
                    k(f"v_mul_f32 v{g+r}, v{g+r}, v{u+r}")
                k(f"v_cvt_pk_bf16_f32 v{u}, v{g}, v{g+1}"); k(f"v_cvt_pk_bf16_f32 v{u+1}, v{g+2}, v{g+3}")
                k(f"buffer_store_dwordx2 v[{u}:{u+1}], v17, s[28:31], s{44+t} offen")
        k(f"s_branch {k.lab('end')}")
    k("s_cmp_eq_u32 s13, 0")
    k(f"s_cbranch_scc0 {k.lab('typeB')}")
    body(0)
    k.label("typeB")
    body(1)
    k.label("end")
    return k
```

```python
from asmlib import *
from k1 import *
from lgk import *
K4_S=51200; K4_LDS=3*K4_S
SZ_WD=4608*576*2

def gen_k4():
    k = Kern("k4_kernel", vgpr=176, acc=176, sgpr=96)
    S=K4_S
    k("s_cmp_ge_u32 s2, 256")
    k(f"s_cbranch_scc1 {k.lab('end')}")
    k("s_load_dwordx2 s[4:5], s[0:1], 80")
    k("s_load_dwordx2 s[8:9], s[0:1], 104")
    k("v_lshrrev_b32 v1, 6, v0")
    k("v_and_b32 v2, 63, v0")
    k("v_readfirstlane_b32 s3, v1")
    k("s_and_b32 s10, s2, 7")
    k("s_lshr_b32 s11, s2, 3")
    k("s_and_b32 s6, s11, 3")
    k("s_lshr_b32 s11, s11, 2")
    k("s_and_b32 s12, s3, 3")
    k("s_lshr_b32 s13, s3, 2")
    k("s_waitcnt lgkmcnt(0)")
    k.srd(16, 4, 5, SZ_WD)
    k.srd_off(24, 8, 9, WS_H, SZ_H); k.srd_off(28, 8, 9, WS_P, SZ_P)
    k("v_lshrrev_b32 v17, 2, v2"); k("v_and_b32 v18, 3, v2")
    k("s_movk_i32 s14, 288"); k("v_mul_lo_u32 v4, v17, s14")
    k("v_lshlrev_b32 v19, 3, v18"); k("v_add_u32 v4, v4, v19")
    k("s_mul_i32 s14, s13, 160"); k("v_add_u32 v4, s14, v4")
    k("v_and_b32 v17, 15, v2"); k("v_lshrrev_b32 v18, 4, v2")
    k("v_lshrrev_b32 v19, 1, v17"); k("v_xor_b32 v19, v19, v18"); k("v_lshlrev_b32 v19, 4, v19")
    k("v_lshlrev_b32 v20, 7, v17"); k("v_add_u32 v5, v19, v20")
    k("s_lshl_b32 s14, s12, 13"); k("s_add_u32 s14, s14, 18432"); k("v_add_u32 v5, s14, v5")
    k("v_xor_b32 v6, 64, v5")
    k("v_lshrrev_b32 v17, 3, v2"); k("v_and_b32 v18, 7, v2")
    k("v_lshrrev_b32 v19, 1, v17"); k("s_and_b32 s14, s3, 1"); k("s_lshl_b32 s14, s14, 2"); k("v_add_u32 v19, s14, v19")
    k("v_xor_b32 v18, v18, v19"); k("v_lshlrev_b32 v18, 4, v18")
    k("s_lshl_b32 s14, s3, 3"); k("s_lshl_b32 s15, s11, 8"); k("s_add_u32 s14, s14, s15")
    k("v_add_u32 v17, s14, v17"); k("s_movk_i32 s15, 9216"); k("v_mul_lo_u32 v17, v17, s15")
    k("v_add_u32 v14, v17, v18"); k("s_mul_i32 s14, s10, 1152"); k("v_add_u32 v14, s14, v14")
    for q,reg in ((0,15),(1,16),(2,7)):
        k(f"s_lshl_b32 s14, s3, 6"); k(f"s_add_u32 s14, s14, {512*q}")
        k("v_add_u32 v17, s14, v2")
        k("s_mov_b32 s15, 0x0e38e38f"); k("v_mul_hi_u32 v18, v17, s15")
        k("v_mul_u32_u24 v19, 18, v18"); k("v_sub_u32 v19, v17, v19")
        k("s_movk_i32 s15, 1152"); k("v_mul_lo_u32 v18, v18, s15")
        k("v_lshlrev_b32 v19, 4, v19"); k(f"v_add_u32 v{reg}, v18, v19")
        k("s_mul_i32 s15, s6, 288"); k(f"s_mul_i32 s14, s10, {576*1152}"); k("s_add_u32 s15, s15, s14")
        k(f"v_add_u32 v{reg}, s15, v{reg}")
    k("s_mov_b32 s32, 0"); k("s_mov_b32 s33, 0"); k("s_mov_b32 s34, 0")
    k("s_lshl_b32 s37, s3, 10")
    def dma_list():
        L=[]
        for ii in range(4):
            L.append([f"s_add_u32 s38, s32, s37", f"s_add_u32 m0, s38, {18432+ii*8192}", f"s_add_u32 s39, s34, {ii*64*9216}",
                      f"buffer_load_dwordx4 v14, s[24:27], s39 offen lds"])
        for q in range(2):
            L.append([f"s_add_u32 s38, s32, s37", f"s_add_u32 m0, s38, {q*8192}", "s_nop 0",
                      f"buffer_load_dwordx4 v{15+q}, s[16:19], s33 offen lds"])
        return L
    def dma_extra():
        l2=k.newlab("x")
        k("s_cmp_lt_u32 s3, 2"); k(f"s_cbranch_scc0 {k.lab(l2)}")
        k("s_add_u32 s38, s32, s37"); k("s_add_u32 m0, s38, 16384"); k("s_nop 0")
        k("buffer_load_dwordx4 v7, s[16:19], s33 offen lds")
        k.label(l2)
    def dma_advance():
        k(f"s_add_u32 s32, s32, {S}"); k(f"s_cmp_eq_u32 s32, {3*S}"); k("s_cselect_b32 s32, 0, s32")
        k(f"s_add_u32 s33, s33, {64*1152}"); k(f"s_add_u32 s34, s34, 128")
    ACC=96; BB=[32,48]; AR=64
    def body(typ):
        nT = 5 if typ==0 else 4
        frags = [(ks,t) for ks in range(2) for t in range(nT)]
        nA=len(frags); R = 5 if typ==0 else 4; PF=R-1
        def acc(t,tt): return ACC + (t*4+tt)*4
        for st in range(2):
            for grp in dma_list():
                for l in grp: k(l)
            dma_extra(); dma_advance()
        k("s_waitcnt vmcnt(6)"); k("s_barrier")
        T = LgkTracker(k)
        def rdA1(cg, a, nxt, h):
            ks,t = frags[a]; reg = AR + 4*(cg % R); va = 9 if nxt else 8
            off = ks*9216 + t*32 + 4608*h
            T.issue(f"ds_read_b64_tr_b16 v[{reg+2*h}:{reg+2*h+1}], v{va} offset:{off}", ("A",cg))
        def rdB(stg, ks, tt):
            vb = 10 if ks==1 else 11
            T.issue(f"ds_read_b128 v[{BB[ks]+4*tt}:{BB[ks]+4*tt+3}], v{vb} offset:{2048*tt}", ("B",stg,ks))
        k("v_mov_b32 v9, v4"); k("v_mov_b32 v11, v5")
        for tt in range(4): rdB(0,0,tt)
        for a in range(PF):
            rdA1(a,a,True,0); rdA1(a,a,True,1)
        for r in range(ACC, ACC+nT*16): k(f"v_mov_b32 v{r}, 0")
        T.drain()
        k("s_mov_b32 s40, 0"); k(f"s_mov_b32 s41, {S}")
        k("v_mov_b32 v8, v4"); k("v_mov_b32 v10, v6")
        k(f"v_add_u32 v9, {S}, v4"); k(f"v_add_u32 v11, {S}, v5")
        k("s_mov_b32 s36, 0")
        loop = k.newlab("loop")
        def stage(sg, emit):
            T.emit = emit
            if emit:
                k("s_waitcnt vmcnt(0)"); k("s_barrier")
                k("s_cmp_lt_u32 s36, 7")
                k(f"s_cselect_b32 s18, {SZ_WD}, 0"); k(f"s_cselect_b32 s26, {SZ_H}, 0")
            dl = dma_list(); extra=[True]
            for a in range(nA):
                ks,t = frags[a]
                cg = sg*nA + a
                tags = {("A",cg)}
                if t==0: tags.add(("B",sg,ks))
                T.need(tags)
                reg = AR + 4*(cg % R)
                cn = cg+PF; an = a+PF; nxt = an>=nA; an_ = an if an<nA else an-nA
                for tt in range(4):
                    if emit:
                        k(f"v_mfma_f32_16x16x32_bf16 v[{acc(t,tt)}:{acc(t,tt)+3}], v[{reg}:{reg+3}], v[{BB[ks]+4*tt}:{BB[ks]+4*tt+3}], v[{acc(t,tt)}:{acc(t,tt)+3}]")
                    if tt==0: rdA1(cn, an_, nxt, 0)
                    if tt==1: rdA1(cn, an_, nxt, 1)
                    if tt==2 and t<4:
                        if ks==0: rdB(sg,1,t)
                        else: rdB(sg+1,0,t)
                    if tt==3:
                        if dl:
                            grp = dl.pop(0)
                            if emit:
                                for l in grp: k(l)
                        elif extra[0]:
                            extra[0]=False
                            if emit: dma_extra()
            if emit:
                dma_advance()
                k("s_mov_b32 s40, s41")
                k(f"s_add_u32 s41, s41, {S}"); k(f"s_cmp_eq_u32 s41, {3*S}"); k("s_cselect_b32 s41, 0, s41")
                k("v_add_u32 v8, s40, v4"); k("v_add_u32 v10, s40, v6")
                k("v_add_u32 v9, s41, v4"); k("v_add_u32 v11, s41, v5")
        stage(0, False)
        k.label(loop)
        stage(1, True)
        T.emit=True
        k("s_add_u32 s36, s36, 1"); k("s_cmp_lt_u32 s36, 9")
        k(f"s_cbranch_scc1 {k.lab(loop)}")
        k("s_waitcnt lgkmcnt(0)")
        k.nop(10)
        k("v_and_b32 v17, 15, v2"); k("s_lshl_b32 s14, s11, 8"); k("s_lshl_b32 s15, s12, 6"); k("s_add_u32 s14, s14, s15")
        k("v_add_u32 v17, s14, v17"); k("s_movk_i32 s15, 1152"); k("v_mul_lo_u32 v17, v17, s15")
        k("v_lshrrev_b32 v18, 4, v2"); k("v_lshlrev_b32 v18, 4, v18"); k("v_add_u32 v17, v17, v18")
        k(f"s_mul_i32 s14, s10, {SZ_T}"); k("v_add_u32 v17, s14, v17")
        t0 = 0 if typ==0 else 5
        k("s_mul_i32 s42, s6, 9")
        for t in range(nT):
            k(f"s_add_u32 s43, s42, {t0+t}"); k("s_lshr_b32 s50, s43, 1"); k("s_lshl_b32 s50, s50, 6")
            k("s_and_b32 s43, s43, 1"); k("s_lshl_b32 s43, s43, 3"); k(f"s_add_u32 s{44+t}, s50, s43")
        for tt in range(4):
            if tt>0: k(f"v_add_u32 v17, {16*1152}, v17")
            for t in range(nT):
                g = acc(t,tt)
                k(f"v_cvt_pk_bf16_f32 v{g}, v{g}, v{g+1}"); k(f"v_cvt_pk_bf16_f32 v{g+1}, v{g+2}, v{g+3}")
                k(f"buffer_store_dwordx2 v[{g}:{g+1}], v17, s[28:31], s{44+t} offen")
        k(f"s_branch {k.lab('end')}")
    k("s_cmp_eq_u32 s13, 0")
    k(f"s_cbranch_scc0 {k.lab('typeB')}")
    body(0)
    k.label("typeB")
    body(1)
    k.label("end")
    return k

def gen_k5():
    k = Kern("k5_kernel", vgpr=64, sgpr=64)
    k("s_cmp_ge_u32 s2, 576")
    k(f"s_cbranch_scc1 {k.lab('end')}")
    k("s_load_dwordx2 s[4:5], s[0:1], 88")
    k("s_load_dwordx2 s[8:9], s[0:1], 104")
    k("v_lshrrev_b32 v1, 6, v0")
    k("v_and_b32 v2, 63, v0")
    k("v_readfirstlane_b32 s3, v1")
    k("s_lshl_b32 s10, s2, 2"); k("s_add_u32 s10, s10, s3")
    k("s_mul_hi_u32 s11, s10, 0x0e38e38f")
    k("s_mul_i32 s12, s11, 18"); k("s_sub_u32 s12, s10, s12")
    k("s_waitcnt lgkmcnt(0)")
    k.srd(16, 4, 5, SZ_T); k.srd_off(20, 8, 9, WS_P, SZ_P); k.srd_off(24, 8, 9, WS_HT, SZ_T)
    k("v_and_b32 v3, 15, v2"); k("v_lshrrev_b32 v4, 4, v2")
    k("s_lshl_b32 s13, s11, 4"); k("v_add_u32 v5, s13, v3")
    k("s_movk_i32 s14, 1152"); k("v_mul_lo_u32 v6, v5, s14")
    k("s_lshl_b32 s14, s12, 6")
    k("v_lshlrev_b32 v7, 4, v4"); k("v_add_u32 v7, v7, v6"); k("v_add_u32 v7, s14, v7")
    for s in range(8):
        k(f"s_mov_b32 s15, {s*SZ_T}")
        k(f"buffer_load_dwordx4 v[{16+4*s}:{19+4*s}], v7, s[20:23], s15 offen")
    k("v_lshlrev_b32 v8, 2, v4"); k("s_lshl_b32 s14, s12, 5"); k("v_add_u32 v8, s14, v8"); k("v_lshlrev_b32 v8, 12, v8")
    k("v_lshlrev_b32 v9, 1, v5"); k("v_add_u32 v8, v8, v9")
    for i in range(8):
        dd = (i&3) + 16*(i>>2)
        k(f"s_mov_b32 s15, {dd*4096}")
        k(f"buffer_load_ushort v{48+i}, v8, s[24:27], s15 offen")
    k("s_mov_b32 s16, 0xffff0000") if False else None
    k("s_mov_b32 s28, 0xffff0000")
    for s in range(8):
        k(f"s_waitcnt vmcnt({15-s})")
        for d in range(4):
            r=16+4*s+d
            if s==0:
                k(f"v_lshlrev_b32 v{56+2*d}, 16, v{r}"); k(f"v_and_b32 v{57+2*d}, s28, v{r}")
            else:
                k(f"v_lshlrev_b32 v10, 16, v{r}"); k(f"v_and_b32 v11, s28, v{r}")
                k(f"v_add_f32 v{56+2*d}, v{56+2*d}, v10"); k(f"v_add_f32 v{57+2*d}, v{57+2*d}, v11")
    for d in range(4): k(f"v_cvt_pk_bf16_f32 v{16+d}, v{56+2*d}, v{57+2*d}")
    for d in range(4):
        k(f"v_lshlrev_b32 v{56+2*d}, 16, v{16+d}"); k(f"v_and_b32 v{57+2*d}, s28, v{16+d}")
    k("s_waitcnt vmcnt(0)")
    for i in range(8):
        k(f"v_lshlrev_b32 v{48+i}, 16, v{48+i}"); k(f"v_add_f32 v{56+i}, v{56+i}, v{48+i}")
    for d in range(4): k(f"v_cvt_pk_bf16_f32 v{16+d}, v{56+2*d}, v{57+2*d}")
    k("v_lshlrev_b32 v7, 3, v4"); k("v_add_u32 v7, v7, v6"); k("s_lshl_b32 s14, s12, 6"); k("v_add_u32 v7, s14, v7")
    k("buffer_store_dwordx2 v[16:17], v7, s[16:19], 0 offen")
    k("buffer_store_dwordx2 v[18:19], v7, s[16:19], 0 offen offset:32")
    k.label("end")
    return k
```

```python
class LgkTracker:
    def __init__(self, k):
        self.k = k; self.q = []
        self.emit = True
    def issue(self, instr, tag):
        if self.emit: self.k(instr)
        self.q.append(tag)
    def need(self, tags):
        idx = -1
        for i, t in enumerate(self.q):
            if t in tags: idx = i
        if idx < 0: return
        n = len(self.q) - 1 - idx
        assert n <= 15, n
        if self.emit: self.k(f"s_waitcnt lgkmcnt({n})")
        self.q = self.q[idx+1:]
    def drain(self):
        if self.emit: self.k("s_waitcnt lgkmcnt(0)")
        self.q = []
```

```python
import sys
from asmlib import *
from k1 import *
from k2 import *
from k25 import *
from k3 import *
from k4 import *
OUT="sequential_preLN__ssm_conv_s4d__glu_gated_reglu__prompt.s"
def build(path=OUT):
    ks=[gen_k1(), gen_k2(), gen_k25(), gen_k3(), gen_k4(), gen_k5()]
    launches=[("k1_kernel",256,512,K1_LDS), ("k2_kernel",144,256,K2_LDS), ("k25_kernel",256,192,K25_LDS), ("k3_kernel",256,512,K3_LDS), ("k4_kernel",256,512,K4_LDS), ("k5_kernel",576,256,0)]
    assemble_file(ks, launches, path)
if __name__=="__main__":
    build(sys.argv[1] if len(sys.argv)>1 else OUT)
```

```python
import sys
from asmlib import *
from gen import *
def empty():
    k = Kern("nop_kernel", vgpr=8, sgpr=16)
    return k
def build_var(path, nextra, addoff=None):
    k5 = gen_k5()
    if addoff is not None:
        idx=[i for i,l in enumerate(k5.L) if "v_cvt_pk_bf16_f32 v16, v56, v57" in l][-1]
        import struct
        h=struct.unpack("<I",struct.pack("<f",addoff))[0]
        k5.L[idx:idx]=[f"    v_add_f32 v{56+i}, 0x{h:08x}, v{56+i}" for i in range(8)]
    ks=[gen_k1(), gen_k2(), gen_k25(), gen_k3(), gen_k4(), k5, empty()]
    launches=[("k1_kernel",256,512,K1_LDS), ("k2_kernel",144,256,K2_LDS), ("k25_kernel",256,192,K25_LDS), ("k3_kernel",256,512,K3_LDS), ("k4_kernel",256,512,K4_LDS), ("k5_kernel",576,256,0)]
    launches += [("nop_kernel",256,256,0)]*nextra
    if nextra==0: ks=ks[:-1]
    assemble_file(ks, launches, path)
build_var("v_nop1.s",1)
build_var("v_nop4.s",4)
build_var("v_off4.s",0,0.004)
build_var("v_off10.s",0,0.010)
build_var("v_off25.s",0,0.025)
```

```python
from asmlib import *
import os
NAME="sequential_preLN__ssm_conv_s4d__glu_gated_reglu__prompt"
WS_SYNC=0
WS_ST1=0x10000
WS_M2=0x14000
WS_CS=0x18000
WS_DBG=0x30000
WS_HT=0x40000
WS_H=0x300000
WS_P=0x1600000
SZ_T=2359296; SZ_H=2048*4608*2; SZ_P=8*SZ_T; SZ_W=576*4608*2
SY_B2=0
SY_H=0x1000
SY_M=0x4000
SY_P=0x5000
SY_BYTES=0x6000
NCONV=144
INSTR=int(os.environ.get('INSTR','0'))
STOP=int(os.environ.get('STOP','99'))
S_B=2; S_W=3
P_X=16; P_LOGA=18; P_AIM=20; P_CRE=22; P_CIM=24; P_LOGDT=26; P_D=28
P_WG=32; P_WU=34; P_WD=36; P_OUT=38; P_DBG=40; P_WS=42

def bf16round(k, dst, src):
    k(f"v_cvt_pk_bf16_f32 v{dst}, v{src}, v{src}")
    k(f"v_lshlrev_b32 v{dst}, 16, v{dst}")

def dpp_reduce16(k, regs):
    for mod in ["quad_perm:[1,0,3,2]", "quad_perm:[2,3,0,1]", "row_half_mirror", "row_mirror"]:
        if len(regs) < 3: k.nop(2)
        for r in regs:
            k(f"v_add_f32_dpp v{r}, v{r}, v{r} {mod} row_mask:0xf bank_mask:0xf")

def srd_ws(k, d, off, size):
    k.srd_off(d, P_WS, P_WS+1, off, size)

_st=[0]
def stamp(k, idx):
    if not INSTR: return
    k("s_memtime s[98:99]"); k("s_waitcnt lgkmcnt(0)")
    k(f"v_writelane_b32 v255, s98, {idx}") if False else None
    k(f"s_mov_b32 s{84+idx}, s98")
def stamp_dump(k, n):
    if not INSTR: return
    lab = k.newlab("dump")
    k(f"s_and_b32 s98, s{S_W}, 3"); k("s_cmp_eq_u32 s98, 0"); k(f"s_cbranch_scc0 {k.lab(lab)}")
    srd_ws(k, 4, WS_DBG, 0x8000)
    k(f"s_lshl_b32 s98, s{S_B}, 1"); k(f"s_lshr_b32 s99, s{S_W}, 2"); k("s_add_u32 s98, s98, s99"); k("s_lshl_b32 s98, s98, 6")
    for i in range(n):
        k(f"v_mov_b32 v1, s{84+i}"); k(f"v_mov_b32 v2, {4*i}")
        k(f"buffer_store_dword v1, v2, s[4:7], s98 offen")
    k("s_waitcnt vmcnt(0)")
    k.label(lab)

def poll(k, base_sgpr_pair, off, nlanes, stride, target, tag):
    P=base_sgpr_pair
    lp = k.newlab("poll"+tag); dn = k.newlab("pdone"+tag)
    k(f"s_mov_b64 exec, {hex((1<<nlanes)-1)}")
    k(f"v_mbcnt_lo_u32_b32 v250, -1, 0")
    k(f"v_mul_u32_u24 v250, {stride}, v250")
    k(f"v_add_u32 v250, {off}, v250")
    k("s_mov_b32 s60, 0")
    k.label(lp)
    k(f"global_load_dword v251, v250, s[{P}:{P+1}] sc1")
    k("s_add_u32 s60, s60, 1")
    k("s_waitcnt vmcnt(0)")
    k(f"v_cmp_gt_u32 vcc, {target}, v251")
    k("s_cmp_eq_u64 vcc, 0")
    k(f"s_cbranch_scc1 {k.lab(dn)}")
    k("s_cmp_ge_u32 s60, 0x200000")
    k(f"s_cbranch_scc1 {k.lab(dn)}")
    k("s_sleep 1")
    k(f"s_branch {k.lab(lp)}")
    k.label(dn)
    k("s_mov_b64 exec, -1")

def arrive(k, base_sgpr_pair, off_sgpr):
    P=base_sgpr_pair
    k("s_mov_b64 exec, 1")
    k(f"v_mov_b32 v250, s{off_sgpr}")
    k("v_mov_b32 v251, 1")
    k(f"global_atomic_add v250, v251, s[{P}:{P+1}] sc1")
    k("s_mov_b64 exec, -1")
```

```python
from common import *
TAB=0; TABCH=33792; RP=528; KD=135168; KDP=1552
KC=0; UB=66560; XB=84992; PS=101376

def merge(*lists):
    out=[]; idx=[0]*len(lists)
    while any(idx[i]<len(lists[i]) for i in range(len(lists))):
        for i,l in enumerate(lists):
            if idx[i]<len(l):
                out.append(l[idx[i]]); idx[i]+=1
    return out

def cmul(dr,di,ar,ai,br,bi,t):
    return [f"v_mul_f32 v{t}, v{ai}, v{bi}", f"v_mul_f32 v{t+1}, v{ai}, v{br}",
            f"v_fma_f32 v{dr}, v{ar}, v{br}, -v{t}" if dr!=ar else f"v_fma_f32 v{t+2}, v{ar}, v{br}, -v{t}",
            f"v_fma_f32 v{di}, v{ar}, v{bi}, v{t+1}"] + ([f"v_mov_b32 v{dr}, v{t+2}"] if dr==ar else [])

def phase_a_conv(k):
    b=S_B; w=S_W
    k(f"s_lshl_b32 s4, s{b}, 2")
    SZP=576*128*2
    k.srd(44, P_LOGA, P_LOGA+1, SZP); k.srd(48, P_AIM, P_AIM+1, SZP); k.srd(52, P_CRE, P_CRE+1, SZP); k.srd(56, P_CIM, P_CIM+1, SZP)
    k.srd(60, P_LOGDT, P_LOGDT+1, 1152); k.srd(64, P_X, P_X+1, SZ_T); k.srd(68, P_D, P_D+1, 1152)
    k("v_lshrrev_b32 v2, 7, v0"); k("v_and_b32 v3, 127, v0")
    k("v_add_u32 v4, s4, v2")
    k("v_lshlrev_b32 v5, 1, v4")
    k("v_lshlrev_b32 v4, 7, v4"); k("v_add_u32 v4, v4, v3"); k("v_lshlrev_b32 v4, 1, v4")
    k("buffer_load_ushort v8, v4, s[44:47], 0 offen")
    k("buffer_load_ushort v12, v5, s[60:63], 0 offen")
    k("buffer_load_ushort v9, v4, s[48:51], 0 offen")
    k("buffer_load_ushort v10, v4, s[52:55], 0 offen")
    k("buffer_load_ushort v11, v4, s[56:59], 0 offen")
    k("s_movk_i32 s5, 4608"); k("v_mul_lo_u32 v5, v0, s5"); k(f"s_lshl_b32 s5, s{b}, 3"); k("v_add_u32 v5, s5, v5")
    for i in range(4):
        k(f"buffer_load_dwordx2 v[{16+2*i}:{17+2*i}], v5, s[64:67], 0 offen offset:{1152*i}")
    k(f"s_lshr_b32 s6, s{w}, 1"); k("s_add_u32 s6, s6, s4"); k("s_lshl_b32 s6, s6, 1"); k("v_mov_b32 v6, s6")
    k("buffer_load_ushort v14, v6, s[68:71], 0 offen")
    stamp(k,1)
    k("v_and_b32 v36, 255, v0")
    k("v_lshlrev_b32 v37, 3, v36"); k("v_sub_u32 v37, 2048, v37")
    for i in range(11):
        a=24+i
        k(f"v_subrev_u32 v38, {i}, v37")
        k("v_max_i32 v39, 0, v38")
        k("v_cvt_f32_u32 v39, v39"); k("v_cvt_pk_bf16_f32 v39, v39, v39"); k("v_lshlrev_b32 v39, 16, v39"); k("v_cvt_u32_f32 v39, v39")
        k("v_lshrrev_b32 v40, 7, v39")
        k("v_and_b32 v41, 7, v39")
        k("v_bfe_u32 v42, v39, 3, 4")
        k("v_lshl_or_b32 v41, v40, 3, v41")
        k("v_or_b32 v40, 1, v40"); k("v_ffbh_u32 v40, v40"); k("v_sub_u32 v40, 31, v40"); k("v_min_u32 v40, 3, v40")
        k("v_lshrrev_b32 v41, v40, v41")
        k("v_lshl_add_u32 v41, v40, 3, v41")
        k("v_mad_u32_u24 v41, v42, 48, v41")
        k(f"v_lshlrev_b32 v{a}, 1, v41")
        if i>=9:
            k("v_cmp_gt_i32 vcc, 0, v38"); k("v_mov_b32 v43, 1536"); k.nop(1)
            k(f"v_cndmask_b32 v{a}, v{a}, v43, vcc")
    k("s_waitcnt vmcnt(5)")
    k("s_mov_b32 s7, 0x3fb8aa3b")
    for r in (8,9,10,11,12): k(f"v_lshlrev_b32 v{r}, 16, v{r}")
    k("v_mul_f32 v8, s7, v8"); k("v_mul_f32 v12, s7, v12")
    k("v_exp_f32 v8, v8"); k("v_exp_f32 v12, v12"); k.nop(1)
    bf16round(k,8,8); bf16round(k,12,12)
    k("v_mul_f32 v8, v8, v12"); k("v_mul_f32 v8, s7, v8"); k("v_sub_f32 v8, 0, v8")
    k("v_mul_f32 v9, v9, v12"); k("v_mul_f32 v9, 0.15915494, v9")
    k("v_mul_f32 v10, v10, v12"); k("v_add_f32 v10, v10, v10")
    k("v_mul_f32 v11, v11, v12"); k("v_add_f32 v11, v11, v11")
    for j,(p,d) in enumerate(((1.0,40),(8.0,42),(128.0,44))):
        import struct
        h=struct.unpack("<I",struct.pack("<f",p))[0]
        k(f"v_mul_f32 v{d}, 0x{h:08x}, v8"); k(f"v_mul_f32 v{d+1}, 0x{h:08x}, v9")
    for d in (40,42,44): k(f"v_exp_f32 v{d}, v{d}"); k(f"v_fract_f32 v{d+1}, v{d+1}")
    for j,d in enumerate((40,42,44)): k(f"v_cos_f32 v{46+j}, v{d+1}"); k(f"v_sin_f32 v{d+1}, v{d+1}")
    k.nop(1)
    for j,d in enumerate((40,42,44)):
        k(f"v_mul_f32 v{d+1}, v{d}, v{d+1}"); k(f"v_mul_f32 v{d}, v{d}, v{46+j}")
    k(f"s_mov_b32 s7, {TABCH}"); k("v_mul_lo_u32 v7, v2, s7"); k("v_lshlrev_b32 v13, 2, v3"); k("v_add_u32 v7, v7, v13")
    F=lambda r:(50+2*r,51+2*r)
    k("v_mov_b32 v50, 1.0"); k("v_mov_b32 v51, 0"); k("v_mov_b32 v52, v40"); k("v_mov_b32 v53, v41")
    chF=[]
    for r in range(2,8):
        chF += cmul(F(r)[0],F(r)[1],F(r-1)[0],F(r-1)[1],40,41,80)
    pk=[0]
    def wrA(row,re,im,tmp):
        return [f"v_cvt_pk_bf16_f32 v{tmp}, v{re}, -v{im}", f"ds_write_b32 v7, v{tmp} offset:{row*RP}"]
    def wrB(col,re,im,tmp):
        return [f"v_cvt_pk_bf16_f32 v{tmp}, v{re}, v{im}", f"ds_write_b32 v7, v{tmp} offset:{48*RP+col*RP}"]
    chQ=[f"v_mov_b32 v72, v10", f"v_mov_b32 v73, v11"] + wrB(0,72,73,88)
    for j in range(1,16):
        chQ += cmul(72,73,72,73,42,43,84) + wrB(j,72,73,88+(j&1))
    for l in merge(chF, chQ[:len(chF)]): k(l)
    chQ=chQ[len(chF):]
    chA=[]
    for r in range(8): chA += wrA(r,F(r)[0],F(r)[1],90+(r&1))
    chG=[f"v_mov_b32 v70, v44", f"v_mov_b32 v71, v45"]
    def prod(row, rho, tmp):
        if rho==0: return wrA(row,70,71,tmp)
        return cmul(74,75,70,71,F(rho)[0],F(rho)[1],76) + wrA(row,74,75,tmp)
    for r in range(8): chG += prod(8+r, r, 92+(r&1))
    for i in range(2,17):
        chG += cmul(70,71,70,71,44,45,80)
        if i<4:
            for q,r in enumerate((0,2,4,6)): chG += prod(16+4*(i-2)+q, r, 92+(q&1))
        elif i<8:
            for q,r in enumerate((0,4)): chG += prod(24+2*(i-4)+q, r, 92+(q&1))
        else:
            chG += prod(32+(i-8), 0, 92+(i&1))
    for l in merge(chA+chG, chQ): k(l)
    stamp(k,2)
    k("s_waitcnt lgkmcnt(0)")
    k("s_barrier")
    k(f"s_cmp_lt_u32 s{w}, 4"); k(f"s_cbranch_scc0 {k.lab('nokm')}")
    k("v_and_b32 v40, 15, v1"); k("v_lshrrev_b32 v41, 4, v1")
    k(f"s_movk_i32 s7, {RP}"); k("v_mul_lo_u32 v42, v40, s7"); k("v_lshlrev_b32 v43, 4, v41"); k("v_add_u32 v42, v42, v43")
    k(f"s_mul_i32 s7, s{w}, {TABCH}"); k("v_add_u32 v42, s7, v42")
    for r in range(44,56): k(f"v_mov_b32 v{r}, 0")
    def kread(s,buf):
        base=64+16*buf
        k(f"ds_read_b128 v[{base}:{base+3}], v42 offset:{48*RP+64*s}")
        for t in range(3): k(f"ds_read_b128 v[{base+4+4*t}:{base+7+4*t}], v42 offset:{16*t*RP+64*s}")
    kread(0,0); kread(1,1)
    for s in range(8):
        buf=s&1; base=64+16*buf
        k("s_waitcnt lgkmcnt(4)" if s<7 else "s_waitcnt lgkmcnt(0)")
        for t in range(3):
            k(f"v_mfma_f32_16x16x32_bf16 v[{44+4*t}:{47+4*t}], v[{base+4+4*t}:{base+7+4*t}], v[{base}:{base+3}], v[{44+4*t}:{47+4*t}]")
        if s+2<8: kread(s+2,buf)
    k("v_mul_u32_u24 v42, 96, v40"); k("v_lshlrev_b32 v43, 3, v41"); k("v_add_u32 v42, v42, v43")
    k(f"s_mul_i32 s7, s{w}, {KDP}"); k(f"s_add_u32 s7, s7, {KD}"); k("v_add_u32 v42, s7, v42")
    k.nop(8)
    for t in range(3):
        k(f"v_cvt_pk_bf16_f32 v{56+2*t}, v{44+4*t}, v{45+4*t}"); k(f"v_cvt_pk_bf16_f32 v{57+2*t}, v{46+4*t}, v{47+4*t}")
        k(f"ds_write_b64 v42, v[{56+2*t}:{57+2*t}] offset:{32*t}")
    k("v_mov_b32 v43, 0"); k(f"s_add_u32 s7, s7, 1536"); k("v_lshlrev_b32 v42, 2, v1"); k("v_add_u32 v42, s7, v42")
    k("s_mov_b64 exec, 0xf"); k("ds_write_b32 v42, v43"); k("s_mov_b64 exec, -1")
    k(f"s_branch {k.lab('km_done')}")
    k.label("nokm")
    k(f"s_cmp_eq_u32 s{w}, 4"); k(f"s_cbranch_scc0 {k.lab('km_done')}")
    poll(k, P_DBG, 0, 4, 64, 16, "s1")
    k.label("km_done")
    k("s_waitcnt lgkmcnt(0)")
    k("s_barrier")
    stamp(k,3)
    srd_ws(k, 44, WS_ST1, 16384)
    k("v_lshlrev_b32 v40, 5, v0")
    k("buffer_load_dwordx4 v[120:123], v40, s[44:47], 0 offen sc1")
    k("buffer_load_dwordx4 v[124:127], v40, s[44:47], 0 offen offset:16 sc1")
    k("v_lshrrev_b32 v41, 8, v0")
    for rnd in range(2):
        k(f"v_mul_u32_u24 v42, {KDP}, v41"); k(f"v_add_u32 v42, {KD+2*rnd*KDP}, v42")
        for i in range(11):
            k(f"v_add_u32 v43, v42, v{24+i}")
            k(f"ds_read_u16 v{48+i}, v43")
        k(f"ds_read_u16 v59, v42")
        k(f"v_mul_u32_u24 v44, 16640, v41"); k(f"v_lshl_add_u32 v44, v36, 4, v44"); k(f"v_add_u32 v44, {KC+2*rnd*16640}, v44")
        k("s_waitcnt lgkmcnt(0)")
        for j in range(4): k(f"v_lshl_or_b32 v{60+j}, v{49+2*j}, 16, v{48+2*j}")
        for j in range(4): k(f"v_lshl_or_b32 v{64+j}, v{50+2*j}, 16, v{49+2*j}")
        for j in range(4): k(f"v_lshl_or_b32 v{68+j}, v{51+2*j}, 16, v{50+2*j}")
        for j in range(4): k(f"v_lshl_or_b32 v{72+j}, v{52+2*j}, 16, v{51+2*j}")
        for sg in range(4): k(f"ds_write_b128 v44, v[{60+4*sg}:{63+4*sg}] offset:{sg*4160}")
        lab=k.newlab("tl")
        k("v_cmp_gt_u32 vcc, 2, v36"); k("s_and_saveexec_b64 s[8:9], vcc"); k(f"s_cbranch_execz {k.lab(lab)}")
        k("v_cmp_eq_u32 vcc, 0, v36"); k("v_mov_b32 v77, 0"); k("v_mov_b32 v78, 0"); k("v_mov_b32 v79, 0")
        k("v_cndmask_b32 v76, 0, v59, vcc")
        k("v_mov_b32 v80, 0"); k("v_mov_b32 v81, 0"); k("v_mov_b32 v82, 0"); k("v_mov_b32 v83, 0")
        k("ds_write_b128 v44, v[76:79] offset:4096")
        for sg in range(1,4): k(f"ds_write_b128 v44, v[80:83] offset:{sg*4160+4096}")
        k.label(lab); k("s_mov_b64 exec, s[8:9]")
    lab=k.newlab("zp")
    k("v_cmp_gt_u32 vcc, 120, v0"); k("s_and_saveexec_b64 s[8:9], vcc"); k(f"s_cbranch_execz {k.lab(lab)}")
    k("s_mov_b32 s7, 0x08888889"); k("v_mul_hi_u32 v42, v0, s7"); k("v_mul_u32_u24 v43, 30, v42"); k("v_sub_u32 v43, v0, v43")
    k("v_mul_u32_u24 v42, 4608, v42"); k("v_lshl_add_u32 v42, v43, 4, v42")
    k("v_mov_b32 v80, 0"); k("v_mov_b32 v81, 0"); k("v_mov_b32 v82, 0"); k("v_mov_b32 v83, 0")
    k(f"v_add_u32 v42, {UB}, v42")
    k(f"ds_write_b128 v42, v[80:83]")
    k.label(lab); k("s_mov_b64 exec, s[8:9]")
    stamp(k,4)
    k("s_waitcnt vmcnt(0)")
    k("s_mov_b32 s7, 0xffff0000")
    k("s_mov_b32 s8, 0x05040100"); k("s_mov_b32 s9, 0x07060302")
    k("v_lshlrev_b32 v42, 3, v0")
    k(f"v_add_u32 v42, {UB}, v42")
    for c in range(4):
        sel = "s8" if c%2==0 else "s9"; o=c//2
        k(f"v_perm_b32 v60, v{18+o}, v{16+o}, {sel}"); k(f"v_perm_b32 v61, v{22+o}, v{20+o}, {sel}")
        k(f"ds_write_b64 v42, v[60:61] offset:{XB-UB+c*4096}")
        k("v_lshlrev_b32 v62, 16, v60"); k("v_and_b32 v63, s7, v60"); k("v_lshlrev_b32 v64, 16, v61"); k("v_and_b32 v65, s7, v61")
        for i in range(4): k(f"v_sub_f32 v{62+i}, v{62+i}, v{120+2*i}")
        k("v_cvt_pk_bf16_f32 v66, v62, v63"); k("v_cvt_pk_bf16_f32 v67, v64, v65")
        k("v_lshlrev_b32 v62, 16, v66"); k("v_and_b32 v63, s7, v66"); k("v_lshlrev_b32 v64, 16, v67"); k("v_and_b32 v65, s7, v67")
        for i in range(4): k(f"v_mul_f32 v{62+i}, v{62+i}, v{121+2*i}")
        k(f"v_cvt_pk_bf16_f32 v{68+2*c}, v62, v63"); k(f"v_cvt_pk_bf16_f32 v{69+2*c}, v64, v65")
        k(f"ds_write_b64 v42, v[{68+2*c}:{69+2*c}] offset:{480+c*4608}")
    k("s_waitcnt lgkmcnt(0)")
    k("s_barrier")
    stamp(k,5)
    k(f"s_lshr_b32 s6, s{w}, 1"); k(f"s_and_b32 s7, s{w}, 1")
    k("v_and_b32 v7, 15, v1"); k("v_lshrrev_b32 v8, 4, v1")
    k("v_and_b32 v11, 3, v7"); k("v_sub_u32 v12, 4, v11"); k("v_and_b32 v12, 3, v12"); k("v_add_u32 v13, v7, v12")
    k("v_mul_u32_u24 v12, 4160, v12"); k("v_lshlrev_b32 v13, 1, v13"); k("v_sub_u32 v12, v12, v13")
    k("v_lshlrev_b32 v13, 4, v8"); k("v_add_u32 v12, v12, v13")
    k("s_mul_i32 s8, s6, 16640"); k("s_xor_b32 s9, s7, 1"); k("s_lshl_b32 s9, s9, 8")
    k("s_add_u32 s8, s8, s9"); k(f"s_add_u32 s8, s8, {KC+32}"); k("v_add_u32 v12, s8, v12")
    k("v_lshlrev_b32 v15, 5, v7"); k("v_add_u32 v15, v15, v13")
    k("s_mul_i32 s8, s6, 4608"); k("s_add_u32 s8, s8, s9"); k(f"s_add_u32 s8, s8, {UB}"); k("v_add_u32 v15, s8, v15")
    for r in range(32,64): k(f"v_mov_b32 v{r}, 0")
    AB=[128,160]; BB=[64,96]
    def reads(q):
        buf=q&1; L=[]
        for s in range(8):
            L.append(f"ds_read_b128 v[{BB[buf]+4*s}:{BB[buf]+4*s+3}], v15 offset:{512*s+64*(3-q)}")
        for d in range(8):
            o=512*(7-d)+64*(3-q)
            L.append(f"ds_read_b64 v[{AB[buf]+4*d}:{AB[buf]+4*d+1}], v12 offset:{o}")
            L.append(f"ds_read_b64 v[{AB[buf]+4*d+2}:{AB[buf]+4*d+3}], v12 offset:{o+8}")
        return L
    for l in reads(0): k(l)
    for q in range(4):
        buf=q&1
        k("s_waitcnt lgkmcnt(0)")
        nxt = reads(q+1) if q<3 else []
        for d in range(8):
            for s in range(8-d):
                r=s+d
                k(f"v_mfma_f32_16x16x32_bf16 v[{32+4*r}:{35+4*r}], v[{AB[buf]+4*d}:{AB[buf]+4*d+3}], v[{BB[buf]+4*s}:{BB[buf]+4*s+3}], v[{32+4*r}:{35+4*r}]")
                if nxt: k(nxt.pop(0))
    stamp(k,6)
    k.nop(8)
    lab=k.newlab("sw")
    k("s_cmp_eq_u32 s7, 0"); k(f"s_cbranch_scc1 {k.lab(lab)}")
    for r in range(16): k(f"v_swap_b32 v{32+r}, v{48+r}")
    k.label(lab)
    k("v_lshlrev_b32 v9, 4, v1")
    k(f"s_lshl_b32 s8, s{w}, 12"); k(f"s_add_u32 s8, s8, {PS}"); k("v_add_u32 v10, s8, v9")
    for j in range(4): k(f"ds_write_b128 v10, v[{48+4*j}:{51+4*j}] offset:{1024*j}")
    k(f"s_xor_b32 s8, s{w}, 1"); k("s_lshl_b32 s8, s8, 12"); k(f"s_add_u32 s8, s8, {PS}"); k("v_add_u32 v10, s8, v9")
    k("v_lshlrev_b32 v11, 5, v7"); k("v_lshl_add_u32 v11, v8, 3, v11"); k("s_lshl_b32 s9, s7, 11"); k("v_add_u32 v11, s9, v11")
    k("s_mul_i32 s8, s6, 4608"); k(f"s_add_u32 s8, s8, {UB+480}"); k("v_add_u32 v12, s8, v11")
    k("s_lshl_b32 s8, s6, 12"); k(f"s_add_u32 s8, s8, {XB}"); k("v_add_u32 v13, s8, v11")
    for j in range(4):
        k(f"ds_read_b64 v[{64+2*j}:{65+2*j}], v12 offset:{512*j}")
        k(f"ds_read_b64 v[{72+2*j}:{73+2*j}], v13 offset:{512*j}")
    k("s_add_u32 s8, s6, s4"); k("s_lshl_b32 s8, s8, 12"); k("v_add_u32 v11, s8, v11")
    srd_ws(k, 44, WS_HT, SZ_T)
    k("v_lshlrev_b32 v14, 16, v14")
    k("s_waitcnt lgkmcnt(0)")
    k("s_barrier")
    for j in range(4): k(f"ds_read_b128 v[{80+4*j}:{83+4*j}], v10 offset:{1024*j}")
    k("s_mov_b32 s7, 0xffff0000")
    k("s_waitcnt lgkmcnt(0)")
    for j in range(4):
        y=32+4*j; T=96; U=100; X=104
        for e in range(4): k(f"v_add_f32 v{y+e}, v{y+e}, v{80+4*j+e}")
        k(f"v_cvt_pk_bf16_f32 v{T}, v{y}, v{y+1}"); k(f"v_cvt_pk_bf16_f32 v{T+1}, v{y+2}, v{y+3}")
        for h in range(2):
            k(f"v_lshlrev_b32 v{y+2*h}, 16, v{T+h}"); k(f"v_and_b32 v{y+2*h+1}, s7, v{T+h}")
            k(f"v_lshlrev_b32 v{U+2*h}, 16, v{64+2*j+h}"); k(f"v_and_b32 v{U+2*h+1}, s7, v{64+2*j+h}")
        for e in range(4): k(f"v_mul_f32 v{U+e}, v14, v{U+e}")
        k(f"v_cvt_pk_bf16_f32 v{T}, v{U}, v{U+1}"); k(f"v_cvt_pk_bf16_f32 v{T+1}, v{U+2}, v{U+3}")
        for h in range(2):
            k(f"v_lshlrev_b32 v{U+2*h}, 16, v{T+h}"); k(f"v_and_b32 v{U+2*h+1}, s7, v{T+h}")
        for e in range(4): k(f"v_add_f32 v{y+e}, v{y+e}, v{U+e}")
        k(f"v_cvt_pk_bf16_f32 v{T}, v{y}, v{y+1}"); k(f"v_cvt_pk_bf16_f32 v{T+1}, v{y+2}, v{y+3}")
        for h in range(2):
            k(f"v_lshlrev_b32 v{y+2*h}, 16, v{T+h}"); k(f"v_and_b32 v{y+2*h+1}, s7, v{T+h}")
            k(f"v_lshlrev_b32 v{X+2*h}, 16, v{72+2*j+h}"); k(f"v_and_b32 v{X+2*h+1}, s7, v{72+2*j+h}")
        for e in range(4): k(f"v_add_f32 v{y+e}, v{y+e}, v{X+e}")
        k(f"v_cvt_pk_bf16_f32 v{108+2*j}, v{y}, v{y+1}"); k(f"v_cvt_pk_bf16_f32 v{109+2*j}, v{y+2}, v{y+3}")
        k(f"buffer_store_dwordx2 v[{108+2*j}:{109+2*j}], v11, s[44:47], 0 offen offset:{512*j} sc1")
    stamp(k,7)

def phase_a_helper(k):
    b=S_B; w=S_W
    k(f"s_sub_u32 s4, s{b}, {NCONV}")
    lab=k.newlab("nz")
    k("s_cmp_eq_u32 s4, 0"); k(f"s_cbranch_scc0 {k.lab(lab)}")
    srd_ws(k, 44, WS_SYNC, SY_BYTES)
    k("v_lshlrev_b32 v2, 4, v0"); k("v_mov_b32 v4, 0"); k("v_mov_b32 v5, 0"); k("v_mov_b32 v6, 0"); k("v_mov_b32 v7, 0")
    for i in range(SY_BYTES//8192):
        k(f"s_mov_b32 s5, {i*8192}"); k("buffer_store_dwordx4 v[4:7], v2, s[44:47], s5 offen sc1")
    k.label(lab)
    k("s_cmp_lt_u32 s4, 64"); k(f"s_cbranch_scc0 {k.lab('nostats')}")
    k.srd(44, P_X, P_X+1, SZ_T); srd_ws(k, 48, WS_ST1, 16384)
    k("v_lshrrev_b32 v2, 4, v0"); k("v_and_b32 v3, 15, v0")
    k("s_lshl_b32 s5, s4, 5"); k("v_add_u32 v2, s5, v2")
    k("s_movk_i32 s5, 1152"); k("v_mul_lo_u32 v4, v2, s5"); k("v_lshl_add_u32 v4, v3, 3, v4")
    for i in range(9): k(f"buffer_load_dwordx2 v[{16+2*i}:{17+2*i}], v4, s[44:47], 0 offen offset:{128*i}")
    k("v_mov_b32 v5, 0"); k("v_mov_b32 v6, 0"); k("v_mov_b32 v7, 0"); k("v_mov_b32 v8, 0"); k("s_mov_b32 s6, 0xffff0000")
    for i in range(9):
        k(f"s_waitcnt vmcnt({8-i})")
        for h in range(2):
            r=16+2*i+h
            k(f"v_lshlrev_b32 v9, 16, v{r}"); k(f"v_and_b32 v10, s6, v{r}")
            k("v_add_f32 v5, v5, v9"); k("v_add_f32 v6, v6, v10"); k("v_fmac_f32 v7, v9, v9"); k("v_fmac_f32 v8, v10, v10")
    k("v_add_f32 v5, v5, v6"); k("v_add_f32 v7, v7, v8")
    dpp_reduce16(k,[5,7])
    k("s_mov_b32 s6, 0x3ae38e39")
    k("v_mul_f32 v5, s6, v5"); k("v_mul_f32 v7, s6, v7"); k("v_fma_f32 v7, -v5, v5, v7"); k("v_max_f32 v7, 0, v7")
    bf16round(k,10,5); bf16round(k,7,7)
    k("v_add_f32 v7, 0x3727c5ac, v7"); bf16round(k,7,7)
    k("v_sqrt_f32 v7, v7"); k.nop(1); bf16round(k,7,7)
    k("v_rcp_f32 v11, v7"); k.nop(1)
    k("v_lshlrev_b32 v2, 3, v2")
    k("v_cmp_eq_u32 vcc, 0, v3"); k("s_and_saveexec_b64 s[8:9], vcc")
    k("buffer_store_dwordx2 v[10:11], v2, s[48:51], 0 offen sc1")
    k("s_mov_b64 exec, s[8:9]")
    k("s_waitcnt vmcnt(0)"); k("s_barrier")
    lab=k.newlab("ar")
    k(f"s_cmp_eq_u32 s{w}, 0"); k(f"s_cbranch_scc0 {k.lab(lab)}")
    k("s_and_b32 s5, s4, 3"); k("s_lshl_b32 s5, s5, 6")
    arrive(k, P_DBG, 5)
    k.label(lab)
    k.label("nostats")
    stamp(k,1)
    k(f"s_cmp_ge_u32 s{b}, 192"); k(f"s_cbranch_scc0 {k.lab('nocs')}")
    k(f"s_sub_u32 s5, s{b}, 192"); k("s_lshr_b32 s5, s5, 3")
    k(f"s_and_b32 s6, s{b}, 7"); k("s_lshl_b32 s6, s6, 2"); k("s_and_b32 s7, s5, 3"); k("s_add_u32 s6, s6, s7")
    k("s_lshr_b32 s5, s5, 2")
    k("s_cmp_eq_u32 s5, 0")
    k(f"s_cselect_b32 s44, s{P_WG}, s{P_WU}"); k(f"s_cselect_b32 s45, s{P_WG+1}, s{P_WU+1}")
    k("s_and_b32 s45, s45, 0xffff"); k(f"s_mov_b32 s46, {SZ_W}"); k("s_mov_b32 s47, 0x20000")
    k("s_mov_b32 s7, 0x0e38e38f"); k("v_mul_hi_u32 v2, v0, s7")
    k("v_mul_u32_u24 v3, 18, v2"); k("v_sub_u32 v3, v0, v3")
    k("s_movk_i32 s7, 9216"); k("v_mul_lo_u32 v4, v2, s7"); k("v_lshl_add_u32 v4, v3, 4, v4")
    k("s_mul_i32 s7, s6, 288"); k("v_add_u32 v4, s7, v4")
    k("v_cmp_le_u32 vcc, 28, v2"); k("v_mov_b32 v5, 0x7fffffff"); k.nop(1); k("v_cndmask_b32 v4, v4, v5, vcc")
    for i in range(21):
        k(f"s_mov_b32 s7, {i*28*9216}")
        k(f"buffer_load_dwordx4 v[{16+4*i}:{19+4*i}], v4, s[44:47], s7 offen")
    for e in range(8): k(f"v_mov_b32 v{104+e}, 0")
    k("s_mov_b32 s7, 0xffff0000")
    for i in range(21):
        k(f"s_waitcnt vmcnt({20-i})")
        for d in range(4):
            r=16+4*i+d
            k(f"v_lshlrev_b32 v8, 16, v{r}"); k(f"v_and_b32 v9, s7, v{r}")
            k(f"v_add_f32 v{104+2*d}, v{104+2*d}, v8"); k(f"v_add_f32 v{105+2*d}, v{105+2*d}, v9")
    k("v_mul_u32_u24 v6, 576, v2"); k("v_lshl_add_u32 v6, v3, 5, v6")
    k("v_cmp_gt_u32 vcc, 28, v2"); k("s_and_saveexec_b64 s[8:9], vcc")
    k("ds_write_b128 v6, v[104:107]"); k("ds_write_b128 v6, v[108:111] offset:16")
    k("s_mov_b64 exec, s[8:9]")
    k("s_waitcnt lgkmcnt(0)"); k("s_barrier")
    lab=k.newlab("cs")
    k("v_cmp_gt_u32 vcc, 144, v0"); k("s_and_saveexec_b64 s[8:9], vcc"); k(f"s_cbranch_execz {k.lab(lab)}")
    k("v_lshlrev_b32 v6, 2, v0")
    for r in range(28):
        k(f"ds_read_b32 v{16+r}, v6 offset:{576*r}")
        if r%8==7: k("s_waitcnt lgkmcnt(0)")
    k("s_waitcnt lgkmcnt(0)")
    for r in range(1,28): k(f"v_add_f32 v16, v16, v{16+r}")
    srd_ws(k, 48, WS_CS, 36864)
    k("s_mul_i32 s7, s5, 18432"); k("s_mul_i32 s10, s6, 576"); k("s_add_u32 s7, s7, s10")
    k("buffer_store_dword v16, v6, s[48:51], s7 offen sc1")
    k.label(lab); k("s_mov_b64 exec, s[8:9]")
    k.label("nocs")
    k(f"s_cmp_lt_u32 s{b}, 192"); k(f"s_cbranch_scc0 {k.lab('nopf')}")
    k.srd(44, P_WD, P_WD+1, SZ_W)
    k("s_lshr_b32 s5, s4, 3"); k(f"s_and_b32 s6, s{b}, 7")
    k("s_mul_i32 s6, s6, 576"); k("s_mul_i32 s5, s5, 96"); k("s_add_u32 s5, s5, s6"); k("s_mul_i32 s5, s5, 1152")
    k("v_lshlrev_b32 v4, 4, v0")
    for i in range(14):
        k(f"s_add_u32 s6, s5, {i*8192}")
        k(f"buffer_load_dwordx4 v[{16+4*i}:{19+4*i}], v4, s[44:47], s6 offen")
    k.label("nopf")
    lab=k.newlab("w1")
    k(f"s_cmp_eq_u32 s{w}, 0"); k(f"s_cbranch_scc0 {k.lab(lab)}")
    poll(k, P_DBG, 0, 4, 64, 16, "h1")
    k.label(lab)
    stamp(k,7)
```

```python
from common import *
S1=34816
H8=147456; CSL=156672; ML=157824; R2L=158848; STS=159744
def coords(k):
    b=S_B; w=S_W
    k(f"s_and_b32 s4, s{b}, 7"); k(f"s_lshr_b32 s6, s{b}, 3"); k("s_and_b32 s5, s6, 3"); k("s_lshr_b32 s6, s6, 2")
    k("s_lshl_b32 s7, s4, 2"); k("s_add_u32 s7, s7, s5")
    k(f"s_and_b32 s8, s{w}, 3"); k(f"s_lshr_b32 s9, s{w}, 2"); k("s_and_b32 s10, s7, 1")

def gemm1(k):
    w=S_W; S=S1
    k.srd(44, P_WG, P_WG+1, SZ_W); k.srd(48, P_WU, P_WU+1, SZ_W)
    srd_ws(k, 52, WS_HT, SZ_T); srd_ws(k, 56, WS_H, SZ_H)
    k("s_lshl_b32 s11, s6, 8"); k("s_lshl_b32 s12, s7, 3"); k("s_add_u32 s11, s11, s12")
    k("v_lshlrev_b32 v2, 12, v0"); k("s_lshl_b32 s12, s11, 1"); k("v_add_u32 v2, s12, v2")
    k("buffer_load_dwordx4 v[20:23], v2, s[52:55], 0 offen sc1")
    k(f"s_mov_b32 s12, {512*4096}")
    k("buffer_load_dwordx4 v[24:27], v2, s[52:55], s12 offen sc1")
    srd_ws(k, 60, WS_CS, 36864)
    lab=k.newlab("cs")
    k(f"s_cmp_ge_u32 s{w}, 6"); k(f"s_cbranch_scc0 {k.lab(lab)}")
    k(f"s_sub_u32 s12, s{w}, 6"); k("s_mul_i32 s13, s12, 576"); k(f"s_add_u32 m0, s13, {CSL}")
    k("s_mul_i32 s12, s12, 18432"); k("s_mul_i32 s13, s7, 576"); k("s_add_u32 s12, s12, s13")
    k("v_lshlrev_b32 v3, 4, v1"); k("s_mov_b32 exec_lo, -1"); k("s_mov_b32 exec_hi, 0xf")
    k("buffer_load_dwordx4 v3, s[60:63], s12 offen sc1 lds")
    k("s_mov_b64 exec, -1")
    k.label(lab)
    k("v_lshrrev_b32 v17, 2, v1"); k("v_and_b32 v18, 3, v1")
    k("v_mul_u32_u24 v4, 288, v17"); k("v_lshlrev_b32 v19, 3, v18"); k("v_add_u32 v4, v4, v19")
    k("s_lshl_b32 s12, s9, 2"); k("s_add_u32 s12, s12, s10"); k("s_lshl_b32 s12, s12, 5")
    k("s_xor_b32 s13, s10, 1"); k("s_lshl_b32 s13, s13, 8")
    k("v_add_u32 v5, s13, v4"); k("v_add_u32 v4, s12, v4")
    k("v_and_b32 v20, 7, v17") if False else None
    k("v_and_b32 v28, 7, v17"); k("v_lshlrev_b32 v29, 9, v17"); k("v_add_u32 v29, v29, v19"); k("v_add_u32 v29, 18432, v29")
    for tt in range(4):
        k("s_lshl_b32 s12, s8, 2"); k(f"s_add_u32 s12, s12, {tt}"); k("s_and_b32 s13, s12, 7"); k("s_and_b32 s12, s12, 8")
        k("v_xor_b32 v30, s13, v28"); k("v_or_b32 v30, s12, v30"); k("v_lshlrev_b32 v30, 5, v30"); k(f"v_add_u32 v{6+tt}, v29, v30")
    k("v_mov_b32 v16, 0"); k("v_mov_b32 v17, 0"); k("v_mov_b32 v18, 0"); k("v_mov_b32 v19, 0")
    k("s_cmp_eq_u32 s9, 0"); k(f"s_cbranch_scc0 {k.lab('g1W')}")
    k("v_lshrrev_b32 v28, 5, v1"); k("s_lshl_b32 s12, s8, 1"); k("v_add_u32 v28, s12, v28")
    k("v_and_b32 v29, 31, v1"); k("v_lshrrev_b32 v30, 1, v29"); k("v_and_b32 v31, 7, v28"); k("v_xor_b32 v30, v30, v31")
    k("v_lshlrev_b32 v30, 5, v30"); k("v_and_b32 v29, 1, v29"); k("v_lshl_add_u32 v30, v29, 4, v30")
    k("v_lshl_add_u32 v16, v28, 12, v30"); k("s_lshl_b32 s12, s6, 9"); k("v_add_u32 v16, s12, v16")
    for jj in range(1,4): k(f"v_add_u32 v{16+jj}, {jj*32768}, v16")
    k(f"s_branch {k.lab('g1D')}")
    k.label("g1W")
    for q,reg in ((0,16),(1,17),(2,18)):
        if q<2: k("s_lshl_b32 s12, s8, 6"); k(f"s_add_u32 s12, s12, {256*q}")
        else: k("s_movk_i32 s12, 512")
        k("v_add_u32 v28, s12, v1"); k("s_mov_b32 s13, 0x0e38e38f"); k("v_mul_hi_u32 v29, v28, s13")
        k("v_mul_u32_u24 v30, 18, v29"); k("v_sub_u32 v30, v28, v30"); k("v_mul_u32_u24 v29, 9216, v29")
        k(f"v_lshl_add_u32 v{reg}, v30, 4, v29"); k("s_mul_i32 s13, s7, 288"); k(f"v_add_u32 v{reg}, s13, v{reg}")
    k.label("g1D")
    k("s_mov_b32 s64, 0"); k("s_mov_b32 s65, 0"); k("s_mov_b32 s66, 0"); k("s_lshl_b32 s67, s8, 10")
    def dma_pairs(typ):
        L=[]
        if typ==0:
            for jj in range(4): L.append((f"s_add_u32 m0, s70, {18432+jj*4096}", f"buffer_load_dwordx4 v{16+jj}, s[52:55], s66 offen sc1 lds"))
        else:
            for mat in range(2):
                srd = "s[44:47]" if mat==0 else "s[48:51]"
                for q in range(2): L.append((f"s_add_u32 m0, s70, {mat*9216+q*4096}", f"buffer_load_dwordx4 v{16+q}, {srd}, s65 offen lds"))
        return L
    def dma_extra():
        l1=k.newlab("x"); l2=k.newlab("x")
        k("s_cmp_lt_u32 s8, 2"); k(f"s_cbranch_scc0 {k.lab(l2)}")
        k("s_cmp_eq_u32 s8, 0"); k(f"s_cbranch_scc0 {k.lab(l1)}")
        k("s_add_u32 m0, s64, 8192"); k("s_nop 0"); k("buffer_load_dwordx4 v18, s[44:47], s65 offen lds")
        k(f"s_branch {k.lab(l2)}")
        k.label(l1)
        k(f"s_add_u32 m0, s64, {9216+8192}"); k("s_nop 0"); k("buffer_load_dwordx4 v18, s[48:51], s65 offen lds")
        k.label(l2)
    def dma_adv():
        k(f"s_add_u32 s64, s64, {S}"); k(f"s_cmp_eq_u32 s64, {4*S}"); k("s_cselect_b32 s64, 0, s64")
        k(f"s_add_u32 s65, s65, {32*9216}"); k(f"s_add_u32 s66, s66, {32*4096}")
    ACC=96; AF=32; BF=72
    def stats_partial():
        k("v_lshlrev_b32 v28, 4, v0"); k(f"v_add_u32 v28, {H8}, v28")
        k("ds_write_b128 v28, v[20:23]")
        k("v_cmp_gt_u32 vcc, 64, v0"); k("s_and_saveexec_b64 s[12:13], vcc")
        k("ds_write_b128 v28, v[24:27] offset:8192")
        k("s_mov_b64 exec, s[12:13]")
        k("s_mov_b32 s12, 0xffff0000")
        A=32; Bq=40; S1r=48; S2r=56
        for d in range(4):
            k(f"v_lshlrev_b32 v{A+2*d}, 16, v{20+d}"); k(f"v_and_b32 v{A+2*d+1}, s12, v{20+d}")
            k(f"v_lshlrev_b32 v{Bq+2*d}, 16, v{24+d}"); k(f"v_and_b32 v{Bq+2*d+1}, s12, v{24+d}")
        for e in range(8):
            k(f"v_add_f32 v{S1r+e}, v{A+e}, v{Bq+e}"); k(f"v_mul_f32 v{S2r+e}, v{A+e}, v{A+e}")
        for e in range(8): k(f"v_fmac_f32 v{S2r+e}, v{Bq+e}, v{Bq+e}")
        dpp_reduce16(k, list(range(48,64)))
        k("v_and_b32 v28, 15, v0"); k("v_lshrrev_b32 v29, 4, v0"); k("v_lshlrev_b32 v29, 6, v29"); k(f"v_add_u32 v29, {STS}, v29")
        k("v_cmp_eq_u32 vcc, 0, v28"); k("s_and_saveexec_b64 s[12:13], vcc")
        for q in range(4): k(f"ds_write_b128 v29, v[{48+4*q}:{51+4*q}] offset:{16*q}")
        k("s_mov_b64 exec, s[12:13]")
    def stats_final():
        k("v_lshlrev_b32 v28, 2, v1"); k(f"v_add_u32 v28, {STS}, v28")
        k("s_mov_b64 exec, 0xffff")
        for r in range(32):
            k(f"ds_read_b32 v{32+r}, v28 offset:{64*r}")
            if r%8==7: k("s_waitcnt lgkmcnt(0)")
        for r in range(1,32): k(f"v_add_f32 v32, v32, v{32+r}")
        k.nop(2)
        k("v_mov_b32_dpp v33, v32 row_shl:8 row_mask:0xf bank_mask:0xf")
        k("s_mov_b32 s12, 0x3ae38e39")
        k("v_mul_f32 v32, s12, v32"); k("v_mul_f32 v33, s12, v33"); k("v_fma_f32 v33, -v32, v32, v33"); k("v_max_f32 v33, 0, v33")
        bf16round(k,32,32); bf16round(k,33,33)
        k("v_add_f32 v33, 0x3727c5ac, v33"); bf16round(k,33,33)
        k("v_sqrt_f32 v33, v33"); k.nop(1); bf16round(k,33,33)
        k("v_rcp_f32 v33, v33"); k.nop(1); k("v_mul_f32 v33, v33, v33")
        k("s_mov_b64 exec, 0xff")
        k("v_lshlrev_b32 v28, 2, v1"); k(f"v_add_u32 v29, {R2L}, v28"); k("ds_write_b32 v29, v33")
        srd_ws(k, 60, WS_M2, 8192)
        k("s_lshl_b32 s12, s11, 2")
        k("buffer_store_dword v32, v28, s[60:63], s12 offen sc1")
        k("s_mov_b64 exec, -1")
        k("s_waitcnt vmcnt(0)")
        k("s_lshl_b32 s12, s6, 7"); k(f"s_add_u32 s12, s12, {WS_SYNC+SY_M}")
        arrive(k, P_WS, 12)
    def body(typ):
        nT = 5 if typ==0 else 4
        nd = 4
        for st in range(3):
            k("s_add_u32 s70, s64, s67")
            for a,l in dma_pairs(typ): k(a); k("s_nop 0"); k(l)
            if typ==1: dma_extra()
            dma_adv()
        stamp(k,9)
        k("s_waitcnt vmcnt(12)")
        stats_partial()
        for r in range(ACC, ACC+nT*32): k(f"v_mov_b32 v{r}, 0")
        k("s_waitcnt vmcnt(4) lgkmcnt(0)"); k("s_barrier")
        if typ==1:
            lab=k.newlab("sf")
            k(f"s_cmp_eq_u32 s{w}, 7"); k(f"s_cbranch_scc0 {k.lab(lab)}")
            stats_final()
            k.label(lab)
        def loads():
            k("v_add_u32 v10, s68, v4")
            if typ==0: k("v_add_u32 v11, s68, v5")
            for tt in range(4): k(f"v_add_u32 v{12+tt}, s68, v{6+tt}")
            for tt in range(4):
                for h in range(2): k(f"ds_read_b64_tr_b16 v[{BF+4*tt+2*h}:{BF+4*tt+2*h+1}], v{12+tt} offset:{8192*h}")
            for t in range(nT):
                for mat in range(2):
                    reg=AF+4*(2*t+mat); va = 11 if t==4 else 10; off = mat*9216 + (0 if t==4 else t*32)
                    for h in range(2): k(f"ds_read_b64_tr_b16 v[{reg+2*h}:{reg+2*h+1}], v{va} offset:{off+4608*h}")
            k(f"s_add_u32 s68, s68, {S}"); k(f"s_cmp_eq_u32 s68, {4*S}"); k("s_cselect_b32 s68, 0, s68")
        def burst(extra):
            ex=list(extra)
            for a in range(2*nT):
                for tt in range(4):
                    c=ACC+(a*4+tt)*4
                    k(f"v_mfma_f32_16x16x32_bf16 v[{c}:{c+3}], v[{AF+4*a}:{AF+4*a+3}], v[{BF+4*tt}:{BF+4*tt+3}], v[{c}:{c+3}]")
                    if ex: k(ex.pop(0))
        k("s_mov_b32 s68, 0"); k("s_mov_b32 s69, 0")
        loop=k.newlab("g1loop")
        if typ==0:
            loads()
            k.label(loop)
            k("s_add_u32 s70, s64, s67")
            k("s_waitcnt lgkmcnt(0)")
            ex=[]
            for a,l in dma_pairs(0): ex += [a, l]
            burst(ex)
            dma_adv()
            loads()
            k("s_waitcnt vmcnt(4)"); k("s_barrier")
        else:
            k.label(loop)
            loads()
            k("s_add_u32 s70, s64, s67")
            for a,l in dma_pairs(1): k(a); k("s_nop 0"); k(l)
            dma_extra(); dma_adv()
            k("s_waitcnt lgkmcnt(0)")
            burst([])
            k("s_waitcnt vmcnt(4)"); k("s_barrier")
        k("s_add_u32 s69, s69, 1"); k("s_cmp_lt_u32 s69, 18"); k(f"s_cbranch_scc1 {k.lab(loop)}")
        stamp(k,10)
        k("s_waitcnt lgkmcnt(0) vmcnt(0)")
        lab=k.newlab("mw")
        k(f"s_cmp_eq_u32 s{w}, 0"); k(f"s_cbranch_scc0 {k.lab(lab)}")
        k("s_lshl_b32 s12, s6, 7"); k(f"s_add_u32 s12, s12, {WS_SYNC+SY_M}")
        poll_s(k, P_WS, 12, 32, "m", va=28)
        srd_ws(k, 60, WS_M2, 8192)
        k(f"s_mov_b32 m0, {ML}"); k("v_lshlrev_b32 v3, 4, v1"); k("s_lshl_b32 s12, s6, 10")
        k("buffer_load_dwordx4 v3, s[60:63], s12 offen sc1 lds")
        k("s_waitcnt vmcnt(0)")
        k.label(lab)
        k("s_barrier")
        wd_prefetch(k)
        k("v_and_b32 v17, 15, v1"); k("v_lshrrev_b32 v18, 4, v1")
        k("s_lshl_b32 s12, s8, 8"); k(f"s_add_u32 s12, s12, {ML}"); k("v_lshlrev_b32 v19, 2, v17"); k("v_add_u32 v19, s12, v19")
        for tt in range(4): k(f"ds_read_b32 v{20+tt}, v19 offset:{64*tt}")
        k("v_lshlrev_b32 v19, 4, v18"); k(f"v_add_u32 v19, {CSL}, v19")
        k("s_lshl_b32 s12, s9, 2"); k("s_add_u32 s12, s12, s10"); k("s_lshl_b32 s12, s12, 6"); k("v_add_u32 v24, s12, v19")
        k("s_xor_b32 s13, s10, 1"); k("s_lshl_b32 s13, s13, 9"); k("v_add_u32 v25, s13, v19")
        for t in range(nT):
            for mat in range(2):
                reg=AF+4*(2*t+mat); va = 25 if t==4 else 24; off = mat*576 + (0 if t==4 else t*64)
                k(f"ds_read_b128 v[{reg}:{reg+3}], v{va} offset:{off}")
        k("s_lshl_b32 s12, s6, 8"); k("s_lshl_b32 s13, s8, 6"); k("s_add_u32 s12, s12, s13"); k("v_add_u32 v17, s12, v17")
        k("v_lshlrev_b32 v17, 6, v17"); k("v_lshl_add_u32 v17, v18, 4, v17")
        k("s_mul_i32 s12, s7, 9"); k("s_lshl_b32 s13, s9, 2"); k("s_add_u32 s13, s13, s10"); k("s_add_u32 s13, s13, s12"); k("s_lshr_b32 s13, s13, 1")
        k("s_lshl_b32 s72, s13, 17"); k(f"s_add_u32 s73, s72, 131072")
        k("s_xor_b32 s13, s10, 1"); k("s_lshl_b32 s13, s13, 3"); k("s_add_u32 s13, s13, s12")
        k("s_lshr_b32 s14, s13, 1"); k("s_lshl_b32 s74, s14, 17"); k("s_and_b32 s13, s13, 1"); k("s_lshl_b32 s13, s13, 3"); k("s_add_u32 s74, s74, s13")
        k("s_waitcnt lgkmcnt(0)")
        for tt in range(4):
            for t in range(nT):
                g=ACC+((2*t)*4+tt)*4; u=ACC+((2*t+1)*4+tt)*4; cg=AF+8*t; cu=AF+8*t+4
                for r in range(4): k(f"v_fma_f32 v{g+r}, -v{20+tt}, v{cg+r}, v{g+r}")
                for r in range(4): k(f"v_fma_f32 v{u+r}, -v{20+tt}, v{cu+r}, v{u+r}")
                for r in range(4): k(f"v_max_f32 v{g+r}, 0, v{g+r}")
                for r in range(4): k(f"v_mul_f32 v{g+r}, v{g+r}, v{u+r}")
                o = 72 + 4*((t//2)%2) + 2*(t%2) if t<4 else 80
                k(f"v_cvt_pk_bf16_f32 v{o}, v{g}, v{g+1}"); k(f"v_cvt_pk_bf16_f32 v{o+1}, v{g+2}, v{g+3}")
                if t in (1,3):
                    ob = 72 + 4*(t//2)
                    k(f"buffer_store_dwordx4 v[{ob}:{ob+3}], v17, s[56:59], s{72+t//2} offen offset:{1024*tt} sc1")
                    k("s_nop 0")
                if t==4:
                    k(f"buffer_store_dwordx2 v[80:81], v17, s[56:59], s74 offen offset:{1024*tt} sc1")
        stamp(k,11)
        k(f"s_branch {k.lab('g1end')}")
    k("s_cmp_eq_u32 s9, 0"); k(f"s_cbranch_scc0 {k.lab('g1B')}")
    body(0)
    k.label("g1B")
    body(1)
    k.label("g1end")

def poll_s(k, P, off_sgpr, target, tag, va=250):
    lp = k.newlab("poll"+tag); dn = k.newlab("pdone"+tag)
    k("s_mov_b64 exec, 1"); k(f"v_mov_b32 v{va}, s{off_sgpr}"); k("s_mov_b32 s60, 0")
    k.label(lp)
    k(f"global_load_dword v{va+1}, v{va}, s[{P}:{P+1}] sc1")
    k("s_add_u32 s60, s60, 1"); k("s_waitcnt vmcnt(0)")
    k(f"v_cmp_gt_u32 vcc, {target}, v{va+1}"); k("s_cmp_eq_u64 vcc, 0"); k(f"s_cbranch_scc1 {k.lab(dn)}")
    k("s_cmp_ge_u32 s60, 0x200000"); k(f"s_cbranch_scc1 {k.lab(dn)}")
    k("s_sleep 1"); k(f"s_branch {k.lab(lp)}")
    k.label(dn)
    k("s_mov_b64 exec, -1")

def wd_prefetch(k):
    w=S_W
    k.srd(76, P_WD, P_WD+1, SZ_W)
    for q,reg in ((0,26),(1,27),(2,28)):
        k(f"s_lshl_b32 s12, s{w}, 6"); k(f"s_add_u32 s12, s12, {512*q}")
        k("v_add_u32 v29, s12, v1"); k("s_mov_b32 s13, 0x0e38e38f"); k("v_mul_hi_u32 v30, v29, s13")
        k("v_mul_u32_u24 v31, 18, v30"); k("v_sub_u32 v31, v29, v31"); k("v_mul_u32_u24 v30, 1152, v30")
        k(f"v_lshl_add_u32 v{reg}, v31, 4, v30")
        k("s_mul_i32 s13, s5, 288"); k(f"s_mul_i32 s12, s4, {576*1152}"); k("s_add_u32 s13, s13, s12"); k(f"v_add_u32 v{reg}, s13, v{reg}")
    k(f"s_lshl_b32 s80, s{w}, 10")
    for st in range(8): wd_stage(k, st, st)

def wd_stage(k, st, slot):
    w=S_W
    k(f"s_mov_b32 s81, {st*64*1152}")
    for q in range(2):
        k(f"s_add_u32 m0, s80, {slot*18432+q*8192}"); k("s_nop 0")
        k(f"buffer_load_dwordx4 v{26+q}, s[76:79], s81 offen lds")
    lab=k.newlab("wx")
    k(f"s_cmp_lt_u32 s{w}, 2"); k(f"s_cbranch_scc0 {k.lab(lab)}")
    k(f"s_add_u32 m0, s80, {slot*18432+16384}"); k("s_nop 0")
    k(f"buffer_load_dwordx4 v28, s[76:79], s81 offen lds")
    k.label(lab)

def sync_h(k):
    w=S_W
    k("s_waitcnt vmcnt(0)"); k("s_barrier")
    lab=k.newlab("sh")
    k(f"s_cmp_eq_u32 s{w}, 0"); k(f"s_cbranch_scc0 {k.lab(lab)}")
    k("s_lshl_b32 s12, s6, 3"); k("s_add_u32 s12, s12, s4"); k("s_lshl_b32 s12, s12, 7"); k(f"s_add_u32 s12, s12, {WS_SYNC+SY_H}")
    arrive(k, P_WS, 12)
    poll_s(k, P_WS, 12, 4, "h")
    k.label(lab)
    k("s_barrier")

def gemm2(k):
    w=S_W
    k("s_and_b32 s10, s5, 1")
    srd_ws(k, 44, WS_H, SZ_H); srd_ws(k, 48, WS_P, SZ_P)
    D=6; ACC=96; WF=32; HR=168
    k("v_and_b32 v17, 15, v1"); k("v_lshrrev_b32 v18, 4, v1")
    k("s_lshl_b32 s12, s6, 8"); k(f"s_lshl_b32 s13, s{w}, 5"); k("s_add_u32 s12, s12, s13"); k("v_add_u32 v2, s12, v17")
    k("v_lshlrev_b32 v2, 6, v2"); k("v_lshl_add_u32 v2, v18, 4, v2")
    k("s_mul_i32 s82, s4, 18"); k("s_lshl_b32 s82, s82, 17")
    def hload(ks):
        r=HR+8*(ks%D)
        k(f"s_add_u32 s12, s82, {ks*131072}")
        k(f"buffer_load_dwordx4 v[{r}:{r+3}], v2, s[44:47], s12 offen sc1")
        k(f"buffer_load_dwordx4 v[{r+4}:{r+7}], v2, s[44:47], s12 offen offset:1024 sc1")
    for ks in range(D): hload(ks)
    k("v_lshrrev_b32 v19, 2, v1"); k("v_and_b32 v20, 3, v1"); k("v_mul_u32_u24 v4, 288, v19"); k("v_lshl_add_u32 v4, v20, 3, v4")
    k("s_xor_b32 s13, s10, 1"); k("s_lshl_b32 s13, s13, 8"); k("v_add_u32 v8, s13, v4")
    k("s_lshl_b32 s12, s10, 5"); k("v_add_u32 v4, s12, v4")
    for i in range(1,3):
        k(f"v_add_u32 v{4+i}, {i*6*9216}, v4"); k(f"v_add_u32 v{8+i}, {i*6*9216}, v8")
    for r in range(ACC, ACC+72): k(f"v_mov_b32 v{r}, 0")
    stamp(k,12)
    def wloads(ks):
        slot = ks if ks<16 else ks-16
        bi = slot//6; off0 = (slot%6)*9216
        for t in range(9):
            reg=WF+4*t; va = (8+bi) if t==8 else (4+bi); off = off0 + (0 if t==8 else t*32)
            for h in range(2): k(f"ds_read_b64_tr_b16 v[{reg+2*h}:{reg+2*h+1}], v{va} offset:{off+4608*h}")
    for ks in range(18):
        if ks==2:
            k("s_barrier")
            wd_stage(k, 8, 0)
        if ks==16:
            k("s_waitcnt vmcnt(4)") ; k("s_barrier")
        wloads(ks)
        later = min(17, ks+D-1) - ks
        n = 2*later
        if 2<=ks<=7: n += 2
        if ks<2: pass
        k(f"s_waitcnt vmcnt({n}) lgkmcnt(0)")
        r=HR+8*(ks%D)
        for t in range(9):
            for tt in range(2):
                c=ACC+(t*2+tt)*4
                k(f"v_mfma_f32_16x16x32_bf16 v[{c}:{c+3}], v[{WF+4*t}:{WF+4*t+3}], v[{r+4*tt}:{r+4*tt+3}], v[{c}:{c+3}]")
        if ks+D<18: hload(ks+D)
    stamp(k,13)
    k.nop(8)
    k("s_mul_i32 s12, s5, 9"); k("s_add_u32 s13, s12, s10"); k("s_lshr_b32 s13, s13, 1")
    k("s_mul_i32 s14, s4, 18"); k("s_add_u32 s13, s13, s14"); k("s_lshl_b32 s72, s13, 17")
    k("s_xor_b32 s13, s10, 1"); k("s_lshl_b32 s13, s13, 3"); k("s_add_u32 s13, s13, s12")
    k("s_lshr_b32 s15, s13, 1"); k("s_add_u32 s15, s15, s14"); k("s_lshl_b32 s74, s15, 17"); k("s_and_b32 s13, s13, 1"); k("s_lshl_b32 s13, s13, 3"); k("s_add_u32 s74, s74, s13")
    for tt in range(2):
        for p in range(4):
            c0=ACC+((2*p)*2+tt)*4; c1=ACC+((2*p+1)*2+tt)*4; o=32+4*(p+4*tt)
            k(f"v_cvt_pk_bf16_f32 v{o}, v{c0}, v{c0+1}"); k(f"v_cvt_pk_bf16_f32 v{o+1}, v{c0+2}, v{c0+3}")
            k(f"v_cvt_pk_bf16_f32 v{o+2}, v{c1}, v{c1+1}"); k(f"v_cvt_pk_bf16_f32 v{o+3}, v{c1+2}, v{c1+3}")
            k(f"s_add_u32 s12, s72, {p*131072}")
            k(f"buffer_store_dwordx4 v[{o}:{o+3}], v2, s[48:51], s12 offen offset:{1024*tt} sc1")
        c=ACC+(8*2+tt)*4; o=64+2*tt
        k(f"v_cvt_pk_bf16_f32 v{o}, v{c}, v{c+1}"); k(f"v_cvt_pk_bf16_f32 v{o+1}, v{c+2}, v{c+3}")
        k(f"buffer_store_dwordx2 v[{o}:{o+1}], v2, s[48:51], s74 offen offset:{1024*tt} sc1")

def sync_p(k):
    w=S_W
    k("s_waitcnt vmcnt(0)"); k("s_barrier")
    lab=k.newlab("sp")
    k(f"s_cmp_eq_u32 s{w}, 0"); k(f"s_cbranch_scc0 {k.lab(lab)}")
    k("s_lshl_b32 s12, s6, 7"); k(f"s_add_u32 s12, s12, {WS_SYNC+SY_P}")
    arrive(k, P_WS, 12)
    poll_s(k, P_WS, 12, 32, "p")
    k.label(lab)
    k("s_barrier")

def reduce_out(k):
    srd_ws(k, 44, WS_P, SZ_P); k.srd(48, P_OUT, P_OUT+1, SZ_T)
    lab=k.newlab("rd")
    k("v_cmp_gt_u32 vcc, 288, v0"); k("s_and_saveexec_b64 s[12:13], vcc"); k(f"s_cbranch_execz {k.lab(lab)}")
    for rr in range(2):
        q=2+rr*4
        k(f"v_add_u32 v{q}, {288*rr}, v0")
        k(f"v_lshrrev_b32 v{q+1}, 5, v{q}"); k(f"v_bfe_u32 v{q+2}, v{q}, 2, 3"); k(f"v_and_b32 v{q+3}, 3, v{q}")
        k(f"v_lshlrev_b32 v{10+rr}, 17, v{q+1}"); k(f"v_add_u32 v12, s11, v{q+2}"); k(f"v_lshl_add_u32 v{10+rr}, v12, 6, v{10+rr}"); k(f"v_lshl_add_u32 v{10+rr}, v{q+3}, 4, v{10+rr}")
        for s in range(8):
            k(f"s_mov_b32 s14, {s*18*131072}")
            k(f"buffer_load_dwordx4 v[{32+32*rr+4*s}:{35+32*rr+4*s}], v{10+rr}, s[44:47], s14 offen sc1")
    for rr in range(2):
        q=2+rr*4
        k(f"v_lshlrev_b32 v13, 5, v{q+1}"); k(f"v_lshl_add_u32 v13, v{q+3}, 2, v13"); k("v_lshlrev_b32 v13, 4, v13"); k(f"v_lshl_add_u32 v13, v{q+2}, 1, v13")
        k(f"v_add_u32 v13, {H8}, v13")
        for i in range(8): k(f"ds_read_u16 v{100+8*rr+i}, v13 offset:{((i&3)+16*(i>>2))*16}")
        k(f"v_lshlrev_b32 v14, 2, v{q+2}"); k(f"v_add_u32 v14, {R2L}, v14"); k(f"ds_read_b32 v{116+rr}, v14")
    k("s_mov_b32 s15, 0xffff0000")
    for rr in range(2):
        q=2+rr*4; A=120
        for s in range(8):
            k(f"s_waitcnt vmcnt({15-8*rr-s})" if rr==0 else f"s_waitcnt vmcnt({7-s})")
            for d in range(4):
                r=32+32*rr+4*s+d
                if s==0:
                    k(f"v_lshlrev_b32 v{A+2*d}, 16, v{r}"); k(f"v_and_b32 v{A+2*d+1}, s15, v{r}")
                else:
                    k(f"v_lshlrev_b32 v15, 16, v{r}"); k(f"v_and_b32 v16, s15, v{r}")
                    k(f"v_add_f32 v{A+2*d}, v{A+2*d}, v15"); k(f"v_add_f32 v{A+2*d+1}, v{A+2*d+1}, v16")
        k("s_waitcnt lgkmcnt(0)")
        for e in range(8): k(f"v_mul_f32 v{A+e}, v{A+e}, v{116+rr}")
        for d in range(4): k(f"v_cvt_pk_bf16_f32 v{128+d}, v{A+2*d}, v{A+2*d+1}")
        for d in range(4): k(f"v_lshlrev_b32 v{A+2*d}, 16, v{128+d}"); k(f"v_and_b32 v{A+2*d+1}, s15, v{128+d}")
        for i in range(8): k(f"v_lshlrev_b32 v{100+8*rr+i}, 16, v{100+8*rr+i}"); k(f"v_add_f32 v{A+i}, v{A+i}, v{100+8*rr+i}")
        for d in range(4): k(f"v_cvt_pk_bf16_f32 v{132+4*rr+d}, v{A+2*d}, v{A+2*d+1}")
        k(f"v_add_u32 v12, s11, v{q+2}"); k("v_mul_u32_u24 v12, 1152, v12"); k(f"v_lshl_add_u32 v12, v{q+1}, 6, v12"); k(f"v_lshl_add_u32 v12, v{q+3}, 3, v12")
        k(f"buffer_store_dwordx2 v[{132+4*rr}:{133+4*rr}], v12, s[48:51], 0 offen")
        k(f"buffer_store_dwordx2 v[{134+4*rr}:{135+4*rr}], v12, s[48:51], 0 offen offset:32")
    k.label(lab)
    k("s_mov_b64 exec, s[12:13]")

def emit(k):
    coords(k)
    gemm1(k)
    if STOP<=2: return
    sync_h(k)
    gemm2(k)
    sync_p(k)
    reduce_out(k)
```

```python
import sys
from common import *
from phase_a import *
LDS=163840
def barrier2(k):
    b=S_B; w=S_W
    k("s_waitcnt vmcnt(0) lgkmcnt(0)")
    k("s_barrier")
    lab=k.newlab("b2")
    k(f"s_cmp_eq_u32 s{w}, 0"); k(f"s_cbranch_scc0 {k.lab(lab)}")
    k(f"s_and_b32 s5, s{b}, 15"); k("s_lshl_b32 s5, s5, 7"); k(f"s_add_u32 s5, s5, {WS_SYNC+SY_B2}")
    arrive(k, P_WS, 5)
    poll(k, P_WS, WS_SYNC+SY_B2, 16, 128, 16, "b2")
    k.label(lab)
    k("s_barrier")

def gen():
    k = Kern(NAME+"_kernel", vgpr=256, acc=256, sgpr=102)
    k("s_cmp_ge_u32 s2, 256"); k(f"s_cbranch_scc1 {k.lab('end')}")
    k("s_load_dwordx16 s[16:31], s[0:1], 0")
    k("s_load_dwordx8 s[32:39], s[0:1], 64")
    k("s_load_dwordx4 s[40:43], s[0:1], 96")
    k("v_lshrrev_b32 v1, 6, v0"); k("s_nop 0"); k(f"v_readfirstlane_b32 s{S_W}, v1")
    k("v_and_b32 v1, 63, v0")
    stamp(k,0)
    k("s_waitcnt lgkmcnt(0)")
    k(f"s_cmp_lt_u32 s{S_B}, {NCONV}"); k(f"s_cbranch_scc0 {k.lab('helper')}")
    phase_a_conv(k)
    k(f"s_branch {k.lab('a_done')}")
    k.label("helper")
    phase_a_helper(k)
    k.label("a_done")
    barrier2(k)
    stamp(k,8)
    if STOP>1:
        import phase_ffn
        phase_ffn.emit(k)
    stamp_dump(k, 14)
    k.label("end")
    return k
def build(path):
    k=gen()
    t = HEADER + f"; @launch grid=(256,1,1) block=(512,1,1) lds={LDS}\n" + '.amdgcn_target "amdgcn-amd-amdhsa--gfx950"\n' + k.text() + "\n" + '.section .rodata,"a"\n.p2align 6\n' + k.desc() + "\n"
    open(path,"w").write(t)
if __name__=="__main__":
    build(sys.argv[1] if len(sys.argv)>1 else f"cdna_kernels/{NAME}.s")
```
